```python
import torch

def _softmax(x, axis=-1):
    return torch.softmax(x, dim=axis)
def _gelu(x):
    return torch.nn.functional.gelu(x, approximate="tanh")
def _silu(x):
    return torch.nn.functional.silu(x)
def _sigmoid(x):
    return torch.sigmoid(x)
def _layernorm(x, axis=-1, eps=1e-5):
    m = x.mean(dim=axis, keepdim=True)
    v = x.var(dim=axis, keepdim=True, unbiased=False)
    return (x - m) / torch.sqrt(v + eps)
def _scatter_add(tgt, idx, src, axis=0):
    return tgt.clone().index_add_(axis, idx, src)
def _segment_sum(src, seg, n):
    out = torch.zeros((n,) + src.shape[1:], dtype=src.dtype)
    return out.index_add_(0, seg, src)
def _pad(x, pw):
    flat = tuple(v for pair in reversed(pw) for v in pair)
    return torch.nn.functional.pad(x, flat)

kernel_name = 'gated_mix__ssm_conv_h3__ssm_conv_s4d__prompt'

def setup_inputs():

    _w = (lambda a: (lambda t: t.to(torch.bfloat16) if t.is_floating_point() else t)(torch.as_tensor(a)))
    def _A_setup():
        B, S, D = 1, 2048, 576
        ks = 4
        return {
            "q": _w((lambda *s: torch.randn(*s, dtype=torch.bfloat16) * 0.05)(B, S, D)),
            "k": _w((lambda *s: torch.randn(*s, dtype=torch.bfloat16) * 0.8)(B, S, D)),
            "v": _w((lambda *s: torch.randn(*s, dtype=torch.bfloat16) * 0.8)(B, S, D)),
            "shift_k": _w((lambda *s: torch.randn(*s, dtype=torch.bfloat16) * 0.8)(D, ks) * 0.5),
            "ssm_k": _w((lambda *s: torch.randn(*s, dtype=torch.bfloat16) * 0.8)(D, S) * (1.0 / S ** 0.5)),
            "ssm_D": _w((lambda *s: torch.randn(*s, dtype=torch.bfloat16) * 0.8)(D)),
        }
    _A_in = _A_setup()

    def _B_setup():
        Bsz, L, D, N = 1, 2048, 576, 128
        return {
            "u": _w((lambda *s: torch.randn(*s, dtype=torch.bfloat16) * 0.05)(Bsz, L, D)),
            "log_A_real": _w((lambda *s: torch.randn(*s, dtype=torch.bfloat16) * 3.2)(D, N) * 0.5),
            "A_imag": _w((lambda *s: torch.randn(*s, dtype=torch.bfloat16) * 0.2)(D, N) * 3.14),
            "C_real": _w((lambda *s: torch.randn(*s, dtype=torch.bfloat16) * 3.2)(D, N) / N ** 0.5),
            "C_imag": _w((lambda *s: torch.randn(*s, dtype=torch.bfloat16) * 3.2)(D, N) / N ** 0.5),
            "log_dt": _w((lambda *s: torch.randn(*s, dtype=torch.bfloat16) * 0.2)(D) * 0.5 - 4.0),
            "D_skip": _w((lambda *s: torch.randn(*s, dtype=torch.bfloat16) * 0.4)(D)),
        }
    _B_in = _B_setup()

    return {
        "A_q": _A_in["q"],
        "A_k": _A_in["k"],
        "A_v": _A_in["v"],
        "A_shift_k": _A_in["shift_k"],
        "A_ssm_k": _A_in["ssm_k"],
        "A_ssm_D": _A_in["ssm_D"],
        "B_u": _B_in["u"],
        "B_log_A_real": _B_in["log_A_real"],
        "B_A_imag": _B_in["A_imag"],
        "B_C_real": _B_in["C_real"],
        "B_C_imag": _B_in["C_imag"],
        "B_log_dt": _B_in["log_dt"],
        "B_D_skip": _B_in["D_skip"],
        "gate_w": _w((lambda *s: torch.randn(*s, dtype=torch.bfloat16) * 0.05)(576) * 16.0),
    }

def reference(A_q, A_k, A_v, A_shift_k, A_ssm_k, A_ssm_D, B_u, B_log_A_real, B_A_imag, B_C_real, B_C_imag, B_log_dt, B_D_skip, gate_w):
    def _A_ref(q, k, v, shift_k, ssm_k, ssm_D):
        B, S, D = q.shape
        ks = shift_k.shape[-1]
        k_pad = _pad(k, ((0, 0), (ks - 1, 0), (0, 0)))
        k_shift = torch.zeros_like(k)
        for t in range(ks):
            k_shift = k_shift + k_pad[:, t:t + S, :] * shift_k[:, ks - 1 - t][None, None, :]
        kv = k_shift * v
        L = 2 * S
        kv_pad = _pad(kv, ((0, 0), (0, S), (0, 0)))
        kf_pad = _pad(ssm_k, ((0, 0), (0, S)))
        kv_f = (lambda x, axes=(-2,-1): torch.fft.rfft2(x.float(), dim=axes))(kv_pad[:, None, :, :], axes=(1, 2))
        kf_f = (lambda x, axes=(-2,-1): torch.fft.rfft2(x.float(), dim=axes))(kf_pad[:, None, :], axes=(1, 2))
        kf_f = (lambda x, *d: x.permute(*d))(kf_f, 1, 2, 0)
        y_f = kv_f * kf_f[None, :, :, :]
        y = (lambda x, s, axes=(-2,-1): torch.fft.irfft2(x, s=s, dim=axes).to(torch.bfloat16))(y_f, (1, L), axes=(1, 2))[:, 0, :S, :]
        y = y + kv * ssm_D[None, None, :]
        return q * y

    def _B_ref(u, log_A_real, A_imag, C_real, C_imag, log_dt, D_skip):
        L = u.shape[1]
        dt = torch.exp(log_dt)
        A = -torch.exp(log_A_real) + 1j * A_imag
        C = (C_real + 1j * C_imag) * dt[:, None]
        pos = (lambda x, dt: x.to(dt))(torch.arange(L), log_dt.dtype)
        P = torch.exp((A * dt[:, None])[:, :, None] * pos[None, None, :])
        K = 2.0 * torch.einsum("dn,dnl->dl", C, P).real
        L2 = 2 * L
        u_t = (lambda x, *d: x.permute(*d))(u, 0, 2, 1)
        Kf = (lambda x, *a, **k: torch.fft.rfft(x.float(), *a, **k))(K, L2)
        Uf = (lambda x, *a, **k: torch.fft.rfft(x.float(), *a, **k))(u_t, L2)
        y = (lambda x, *a, **k: torch.fft.irfft(x, *a, **k).to(torch.bfloat16))(Uf * Kf[None, :, :], L2)[:, :, :L]
        y = (lambda x, *d: x.permute(*d))(y, 0, 2, 1)
        return y + u * D_skip[None, None, :]

    x = A_q
    g = _sigmoid((x * gate_w).sum(-1, keepdims=True))
    a = _A_ref(x, A_k, A_v, A_shift_k, A_ssm_k, A_ssm_D)
    b = _B_ref(x, B_log_A_real, B_A_imag, B_C_real, B_C_imag, B_log_dt, B_D_skip)
    return g * a + (1 - g) * b
```

```python
import re, subprocess, copy

TRANS = ("v_exp_f32", "v_log_f32", "v_rcp_f32", "v_rsq_f32", "v_sqrt_f32", "v_sin_f32", "v_cos_f32")
REG = re.compile(r"^-?\|?(?:abs\()?([vsa])(?:(\d+)|\[(\d+):(\d+)\])\)?\|?$")

def regs_of(op):
    op = op.strip()
    if op in ("vcc", "vcc_lo", "vcc_hi"): return {"vcc"}
    if op in ("exec", "exec_lo", "exec_hi"): return {"exec"}
    if op == "m0": return {"m0"}
    m = REG.match(op)
    if not m: return set()
    if m.group(2) is not None: return {m.group(1) + m.group(2)}
    return {m.group(1) + str(i) for i in range(int(m.group(3)), int(m.group(4)) + 1)}

class Ins:
    def __init__(self, text):
        self.text = text
        t = text.split(";")[0].strip()
        self.label = t.endswith(":")
        self.directive = t.startswith(".") and not self.label
        self.op = t.split()[0] if t else ""
        rest = t[len(self.op):].strip()
        ops = []
        for piece in re.split(r",(?![^\[]*\])", rest):
            piece = piece.strip()
            if piece: ops.append(piece.split()[0])
        self.ops = ops
        o = self.op
        self.mfma = o.startswith("v_mfma")
        self.valu = o.startswith("v_") and not self.mfma
        self.dpp = "_dpp" in o
        self.trans = any(o.startswith(x) for x in TRANS)
        self.dot = o.startswith("v_dot")
        self.ds = o.startswith("ds_")
        self.vmem = o.startswith(("buffer_", "global_"))
        self.salu = o.startswith("s_")
        self.ldsdma = self.vmem and (" lds" in t or "_lds_" in o)
        R = [regs_of(x) for x in ops]
        self.w, self.r = set(), set()
        allr = set().union(*R) if R else set()
        if self.mfma:
            self.w = R[0]; self.ab = R[1] | R[2]; self.c = R[3]; self.r = self.ab | self.c
        elif self.valu:
            self.w = set(R[0]); self.r = set().union(*R[1:]) if len(R) > 1 else set()
            if o.startswith(("v_add_co", "v_sub_co", "v_addc_co", "v_subb_co")):
                self.w |= R[1]; self.r = set().union(*R[2:])
            if o.startswith(("v_fmac", "v_dot2c", "v_writelane")) or self.dpp: self.r |= R[0]
            if o.startswith("v_permlane"): self.w = set(allr); self.r = set(allr)
        elif self.ds:
            if o.startswith("ds_read") or "_rtn" in o or "permute" in o or "swizzle" in o:
                self.w = R[0]; self.r = set().union(*R[1:])
                if "d16" in o: self.r |= R[0]
            else: self.r = allr
        elif self.vmem:
            if "load" in o and not self.ldsdma:
                self.w = R[0]; self.r = set().union(*R[1:])
            else: self.r = allr
            self.wide = "store" in o and ("x3" in o or "x4" in o)
            if self.wide: self.data = R[0] if o.startswith("buffer") else R[1]
        elif self.salu:
            if o.startswith(("s_cmp", "s_cbranch", "s_branch", "s_waitcnt", "s_nop", "s_barrier", "s_sleep",
                             "s_setprio", "s_endpgm", "s_bitcmp")):
                self.r = allr
            elif R:
                self.w = set(R[0]); self.r = set().union(*R[1:]) if len(R) > 1 else set()
                if "saveexec" in o: self.w |= {"exec"}
        self.states = 0 if (self.label or self.directive or not o) else 1
        if o == "s_nop": self.states = int(ops[0], 0) + 1

def need(p, c):
    n = 0
    vw = {x for x in p.w if x[0] in "va" and x != "vcc"}
    sw = {x for x in p.w if x[0] == "s" or x == "vcc"}
    if p.valu:
        if c.mfma and vw & c.r: n = max(n, 3 if p.dot else 2)
        if p.trans and c.valu and not c.trans and vw & c.r: n = max(n, 1)
        if c.dpp and vw & c.r: n = max(n, 2)
        if c.op.startswith("v_permlane") and vw & c.r: n = max(n, 2)
        if c.op.startswith(("v_readfirstlane", "v_readlane")) and vw & c.r: n = max(n, 1)
        if sw & c.r:
            if c.valu: n = max(n, 4 if c.op.startswith(("v_readlane", "v_writelane")) else 2)
            if c.vmem: n = max(n, 5)
            if c.salu: n = max(n, 1)
        if p.dot and vw & (c.r | c.w):
            same_c = c.op == p.op and not (vw & (regs_of(c.ops[1]) | regs_of(c.ops[2])))
            if not same_c: n = max(n, 3)
    if p.mfma:
        big = "32x32" in p.op
        if c.mfma:
            if p.w & c.ab: n = max(n, 12 if big else 8)
            if p.w & c.c and p.w != c.c: n = max(n, 10 if big else 6)
        elif p.w & (c.r | c.w): n = max(n, 12 if big else 8)
        if c.valu and p.c & c.w: n = max(n, 7 if big else 3)
    if p.vmem and getattr(p, "wide", False) and p.data & c.w: n = max(n, 2 if c.valu else 1)
    if p.salu and "m0" in p.w and c.ldsdma: n = max(n, 1)
    return n

class Prog:
    def __init__(self):
        self.ins = []
        self.hist = []
        self.nops = 0
    def short(self, c):
        d, miss = 0, 0
        for p in reversed(self.hist):
            miss = max(miss, need(p, c) - d)
            d += p.states
            if d >= 20: break
        return miss
    def e(self, text):
        for line in text.strip("\n").split("\n"):
            line = line.strip()
            if not line or line.startswith(";"):
                continue
            c = Ins(line)
            if c.states:
                miss = self.short(c)
                if miss > 0:
                    n = Ins(f"s_nop {miss-1}")
                    self.ins.append(n); self.hist.append(n); self.nops += miss
                self.hist.append(c)
                self.hist = self.hist[-24:]
            self.ins.append(c)
    def cut(self):
        self.hist = []
    def text(self):
        return "\n".join((i.text if (i.label or i.directive) else "    " + i.text) for i in self.ins) + "\n"

def sizes(lines):
    r = subprocess.run(["llvm-mc", "-triple=amdgcn-amd-amdhsa", "-mcpu=gfx950", "-show-encoding"],
                       input="\n".join(lines), capture_output=True, text=True)
    assert r.returncode == 0, r.stderr
    return [len(m.split(",")) for m in re.findall(r"encoding: \[(.*?)\]", r.stdout)]
```

```python
import sys, copy, struct, math
from asmlib import Prog, Ins, sizes

KNAME = "gated_mix__ssm_conv_h3__ssm_conv_s4d__prompt_kernel"
class Cfg:
    stamps = False
    in_nt = "nt"
    fs = 64
    poll_at = 14
    check_at = 20
    land_at = 27
    st_inflight = 1
    ack_pos = 40
    prefetch_code = True
cfg = Cfg()

ROW = 1152
NB = 2048 * ROW
WS_G, WS_FLAG, WS_UT, UST = 0x1000, 0x8000, 0x80000, 4224
WS_STAMP = 0x600000
WS_END = WS_UT + 1152 * UST
L_SCR, SCR = 0, 8704
USH = 4128
L_K, KST, KPAD = 34816, 4480, 384
L_Y = L_K + 8 * KST
L_STG, STG = L_Y + 37 * 1024, 2176
L_FLAG = L_STG + 4 * STG
LDS_BYTES = L_FLAG + 64
SPIN = 0x8000
def f32(x): return "0x%08x" % struct.unpack("<I", struct.pack("<f", x))[0]
LOG2E, INV2PI = f32(math.log2(math.e)), f32(1 / (2 * math.pi))

sWAVE, sX, sR, sW, sTAG = "s3", "s4", "s5", "s6", "s7"
SQ, SK, SV, SWS, SOUT, SSK, SGW = "s[8:11]", "s[12:15]", "s[16:19]", "s[20:23]", "s[24:27]", "s[28:31]", "s[36:39]"

def vr(a, n=1): return f"v{a}" if n == 1 else f"v[{a}:{a+n-1}]"

nstamp = {}
def stamp(p, role, idx):
    if cfg.stamps:
        p.e(f"s_memrealtime s[{80+2*idx}:{81+2*idx}]\ns_waitcnt lgkmcnt(0)")
def stamp_flush(p, n):
    if not cfg.stamps: return
    p.e(f"s_lshl_b32 s54, s2, 3\ns_add_u32 s54, s54, {sWAVE}\ns_lshl_b32 s54, s54, 6\ns_add_u32 s54, s54, {WS_STAMP}")
    p.e("v_mov_b32 v1, 0")
    for i in range(n):
        p.e(f"v_mov_b32 v2, s{80+2*i}\nbuffer_store_dword v2, v1, {SWS}, s54 offen offset:{4*i}")

def flag_index(p, dst, kind, strip, quarter, tmp="s55"):
    p.e(f"s_mul_i32 {dst}, {kind}, 9\ns_add_u32 {dst}, {dst}, {strip}\ns_lshl_b32 {dst}, {dst}, 2\n"
        f"s_add_u32 {dst}, {dst}, {quarter}\ns_mul_i32 {dst}, {dst}, {32*cfg.fs}\ns_add_u32 {dst}, {dst}, {WS_FLAG}")

def lane_transpose_addrs(p, vIn, vSw, vSr, vOut, stg_sgpr, lane="v1", t="v232", t2="v233"):
    p.e(f"""
    v_lshrrev_b32 {t}, 3, {lane}
    v_and_b32 {t2}, 7, {lane}
    v_mul_u32_u24 {vIn}, {8*ROW}, {t}
    v_lshl_add_u32 {vIn}, {t2}, 2, {vIn}
    v_mul_u32_u24 {vSw}, 272, {t2}
    v_lshl_add_u32 {vSw}, {t}, 4, {vSw}
    v_add_u32 {vSw}, {stg_sgpr}, {vSw}
    v_mul_u32_u24 {vOut}, {UST}, {t}
    v_lshl_add_u32 {vOut}, {t2}, 4, {vOut}
    v_lshrrev_b32 {t}, 4, {lane}
    v_mul_u32_u24 {vSr}, 272, {t}
    v_and_b32 {t2}, 15, {lane}
    v_lshl_add_u32 {vSr}, {t2}, 4, {vSr}
    v_add_u32 {vSr}, {stg_sgpr}, {vSr}
    """)

def load_rows(p, dst, vIn, srd, s0, s4):
    for i in range(8):
        p.e(f"buffer_load_dword v{dst+i}, {vIn}, {srd}, {s0 if i < 4 else s4} offen offset:{(i & 3)*ROW} {cfg.in_nt}")
def load_halo(p, dst, vH, srd):
    for i in range(3):
        p.e(f"buffer_load_dword v{dst+i}, {vH}, {srd}, 0 offen offset:{i*ROW} {cfg.in_nt}")

def publish(p, G, RB, vSw, vSr, vOut, sA, sB, flavor):
    p.e(f"""
    ds_write_b128 {vSw}, {vr(G,4)}
    ds_write_b128 {vSw}, {vr(G+4,4)} offset:128
    ds_read_b128 {vr(RB,4)}, {vSr}
    ds_read_b128 {vr(RB+4,4)}, {vSr} offset:{4*272}
    s_waitcnt lgkmcnt(1)
    buffer_store_dwordx4 {vr(RB,4)}, {vOut}, {SWS}, {sA} offen {flavor}
    s_waitcnt lgkmcnt(0)
    buffer_store_dwordx4 {vr(RB+4,4)}, {vOut}, {SWS}, {sB} offen {flavor}
    """)

def x_pack(p, raw, G, sLo, sHi):
    for i in range(4):
        p.e(f"v_perm_b32 v{G+i}, v{raw+2*i+1}, v{raw+2*i}, {sLo}")
    for i in range(4):
        p.e(f"v_perm_b32 v{G+4+i}, v{raw+2*i+1}, v{raw+2*i}, {sHi}")

def flag_store(p, sOff, vZero, vTag, flavor):
    p.e(f"s_mov_b64 exec, 1\nbuffer_store_dword {vTag}, {vZero}, {SWS}, {sOff} offen {flavor}\ns_mov_b64 exec, -1")

def prologue(p):
    p.e(f"""
    s_cmp_ge_u32 s2, 256
    s_cbranch_scc1 L_end
    s_load_dwordx2 s[8:9], s[0:1], 0
    s_load_dwordx2 s[20:21], s[0:1], 128
    v_lshrrev_b32 v2, 6, v0
    v_and_b32 v1, 63, v0
    v_readfirstlane_b32 {sWAVE}, v2
    s_and_b32 {sX}, s2, 7
    s_lshr_b32 {sR}, s2, 3
    s_mov_b32 s10, {NB}
    s_mov_b32 s11, 0x20000
    s_mov_b32 s22, {WS_STAMP + 0x20000 if cfg.stamps else WS_END}
    s_mov_b32 s23, 0x20000
    s_and_b32 {sW}, {sWAVE}, 3
    s_cmp_ge_u32 {sWAVE}, 4
    s_cbranch_scc1 L_data
    """)

def make_tag(p):
    p.e(f"s_mul_i32 {sTAG}, {sTAG}, 0x0019660d\ns_add_u32 {sTAG}, {sTAG}, 0x3c6ef35f")

Y0, X0, ACC0, NACC, LOW0, STG0, T0 = 2, 68, 132, 8, 164, 200, 216
aY, aX, aYH, aYL, aYw, aUw, aG, aF, vP, vZ, vTagM = ("v%d" % i for i in range(222, 233))
vP2 = "v237"

def cmul(d, a, w):
    return [f"v_pk_mul_f32 {vr(d,2)}, {vr(a,2)}, {vr(w,2)}",
            f"v_pk_mul_f32 {vr(d+2,2)}, {vr(a,2)}, {vr(w+2,2)}",
            f"v_pk_fma_f32 {vr(d,2)}, {vr(a+2,2)}, {vr(w+2,2)}, {vr(d,2)} neg_lo:[1,0,0] neg_hi:[1,0,0]",
            f"v_pk_fma_f32 {vr(d+2,2)}, {vr(a+2,2)}, {vr(w,2)}, {vr(d+2,2)}"]

def matrix_wave(p):
    vIn, vSw, vSr, vOut = "v234", "v235", "v236", "v238"
    RAW, PAR = 2, 10
    stamp(p, "M", 0)
    p.e(f"""
    s_load_dwordx2 s[28:29], s[0:1], 32
    s_load_dwordx8 s[40:47], s[0:1], 56
    s_load_dwordx4 s[48:51], s[0:1], 88
    s_load_dwordx2 s[52:53], s[0:1], 40
    s_mov_b32 s30, {NB}
    s_mov_b32 s31, 0x20000
    s_mul_i32 s56, {sW}, {SCR}
    """)
    lane_transpose_addrs(p, vIn, vSw, vSr, vOut, "s56")
    p.e(f"""
    s_lshr_b32 s57, {sR}, 3
    s_lshl_b32 s58, {sX}, 2
    s_add_u32 s58, s58, s57
    s_and_b32 s59, {sR}, 7               ; strip
    s_lshl_b32 s60, s59, 2
    s_add_u32 s60, s60, {sW}
    s_mul_i32 s61, s58, {64*ROW}
    s_lshl_b32 s62, s60, 5
    s_add_u32 s61, s61, s62
    s_add_u32 s62, s61, {4*ROW}
    s_and_b32 s63, {sW}, 1
    s_lshl_b32 s64, {sR}, 1
    s_add_u32 s64, s64, s63
    s_lshl_b32 s65, {sX}, 6
    s_add_u32 s65, s65, s64
    s_add_u32 s66, s64, 512              ; shared channel
    s_cmp_ge_u32 {sW}, 2
    s_cselect_b32 s67, s65, s66
    s_cselect_b32 s68, s66, s65
    s_cselect_b32 s69, 0, 6
    s_cselect_b32 s70, 2, 0
    s_add_u32 s69, s69, {sW}
    s_add_u32 s70, s70, {sW}
    s_mul_i32 s69, s69, {KST}
    s_mul_i32 s70, s70, {KST}
    s_add_u32 s69, s69, {L_K}
    s_add_u32 s70, s70, {L_K}
    s_lshl_b32 s71, s67, 8
    v_lshl_add_u32 v239, v1, 2, s71
    s_lshr_b32 s72, s67, 1
    s_lshl_b32 s72, s72, 2
    s_lshr_b32 s73, s68, 1
    s_lshl_b32 s73, s73, 2
    s_lshl_b32 s74, s68, 12
    s_waitcnt lgkmcnt(0)
    """)
    load_rows(p, RAW, vIn, SQ, "s61", "s62")
    p.e(f"""
    s_load_dword {sTAG}, s[20:21], 0
    s_load_dword s75, s[48:49], s72
    s_load_dword s76, s[50:51], s72
    s_load_dword s77, s[52:53], s73
    s_load_dword s78, s[28:29], s74
    global_load_dword v{PAR}, v239, s[40:41]
    global_load_dword v{PAR+1}, v239, s[42:43]
    global_load_dword v{PAR+2}, v239, s[44:45]
    global_load_dword v{PAR+3}, v239, s[46:47]
    """)
    npf = 0
    if cfg.prefetch_code:
        p.e(f"""
    s_getpc_b64 s[54:55]
L_pc:
    v_lshlrev_b32 v240, 7, v0
    v_min_u32 v240, L_end-L_pc, v240
    v_mov_b32 v241, s55
    v_add_co_u32 v240, vcc, s54, v240
    v_addc_co_u32 v241, vcc, 0, v241, vcc
    global_load_dword v242, v[240:241], off
    """)
        npf = 1
    p.e(f"""
    v_mov_b32 {vZ}, 0
    v_mov_b32 v14, 0
    v_mov_b32 v15, 0
    v_lshlrev_b32 v16, 3, v1
    v_add_u32 v17, s69, v16
    v_add_u32 v18, s70, v16
    ds_write_b64 v17, v[14:15]
    ds_write_b64 v18, v[14:15]
    s_lshl_b32 s54, {sW}, 2
    s_add_u32 s54, s54, {L_FLAG}
    v_mov_b32 v19, s54
    ds_write_b32 v19, v14
    v_add_u32 v243, s56, v16
    v_lshrrev_b32 v20, 4, v1             ; lane>>4
    v_bfe_u32 v21, v1, 2, 2              ; (lane>>2)&3
    v_and_b32 v22, 3, v1
    v_and_b32 v23, 15, v1
    v_lshlrev_b32 v24, 5, v20
    v_lshl_add_u32 v24, v21, 3, v24      ; 32*qq + 8*e
    v_lshl_add_u32 {aX}, v22, 3, v24
    s_add_u32 s54, s56, 8
    v_add_u32 {aX}, s54, {aX}
    v_lshlrev_b32 v25, 5, v22
    v_sub_u32 v25, v25, v24              ; 32*c - 32*qq - 8*e
    s_mul_i32 s54, {sW}, {KST}
    s_add_u32 s54, s54, {L_K + KPAD + 24 - 128}
    v_add_u32 {aY}, s54, v25
    s_mul_i32 s55, {sX}, 248
    s_add_u32 s54, s54, {4*KST}
    s_sub_u32 s79, s54, s55
    v_add_u32 {aYH}, s79, v25
    s_add_u32 s79, s54, s55
    s_sub_u32 s79, s79, {2*(64*17 - 128) - 128}
    v_add_u32 {aYL}, s79, v25
    s_lshl_b32 s54, {sW}, 2
    s_add_u32 s54, s54, {L_Y}
    v_lshl_add_u32 {aYw}, v1, 4, s54
    v_lshlrev_b32 {aG}, 4, v1
    s_add_u32 s54, s56, 32
    v_add_u32 {aUw}, s54, {aG}
    v_and_b32 {aF}, 31, v1
    v_mul_u32_u24 {aF}, {cfg.fs}, {aF}
    v_lshlrev_b32 v26, 4, v20
    v_add_u32 v26, s56, v26
    v_mov_b32 v31, 544
    v_mad_u32_u24 v244, v23, v31, v26
    v_lshl_add_u32 v27, v21, 1, v22
    v_mad_u32_u24 v245, v27, v31, v26
    v_lshrrev_b32 v28, 1, v21
    v_add_u32 v27, v27, v28
    v_mad_u32_u24 v246, v27, v31, v26
    v_mad_u32_u24 v27, v21, 3, v22
    v_mad_u32_u24 v247, v27, v31, v26
    s_add_u32 s54, s69, {KPAD}
    v_lshl_add_u32 v27, v23, 5, s54      ; K + 32*j
    v_lshl_add_u32 v248, v20, 3, v27
    v_lshrrev_b32 v28, 1, v20
    v_and_b32 v29, 1, v20
    v_lshl_add_u32 v249, v28, 9, v27
    v_lshl_add_u32 v249, v29, 4, v249
    v_lshl_add_u32 v250, v20, 9, v27
    s_mov_b32 s32, 0x05040100
    s_mov_b32 s33, 0x07060302
    s_add_u32 s34, s60, 36
    s_mul_i32 s34, s34, {16*UST}
    s_lshl_b32 s35, s58, 7
    s_add_u32 s34, s34, s35
    s_add_u32 s34, s34, {WS_UT}
    s_add_u32 s35, s34, {8*UST}
    """)
    flag_index(p, "s36", 1, "s59", sW)
    p.e(f"s_mul_i32 s54, s58, {cfg.fs}\ns_add_u32 s36, s36, s54\ns_lshr_b32 s39, {sW}, 1")
    flag_index(p, "s37", "s39", sX, "s57")
    flag_index(p, "s38", "s39", 8, "s57")
    p.e(f"""
    s_mul_i32 s39, s39, 576
    s_add_u32 s12, s39, s65
    s_add_u32 s13, s39, s66
    s_mul_i32 s12, s12, {UST}
    s_mul_i32 s13, s13, {UST}
    s_add_u32 s12, s12, {WS_UT}
    s_add_u32 s13, s13, {WS_UT}
    s_lshl_b32 s63, s63, 4
    s_waitcnt lgkmcnt(0)
    s_barrier
    """)
    make_tag(p)
    p.e(f"""
    s_lshr_b32 s75, s75, s63
    s_lshr_b32 s76, s76, s63
    s_lshr_b32 s77, s77, s63
    s_lshl_b32 s75, s75, 16
    s_lshl_b32 s76, s76, 16
    s_lshl_b32 s77, s77, 16
    s_lshl_b32 s78, s78, 16
    v_mov_b32 {vTagM}, {sTAG}
    v_mov_b32 v30, s75
    v_mul_f32 v30, {LOG2E}, v30
    v_exp_f32 v30, v30
    v_mov_b32 v251, s77
    v_add_f32 v251, s78, v251
    v_cvt_pk_bf16_f32 v251, v251, v251
    v_cvt_pk_bf16_f32 v30, v30, v30
    v_lshlrev_b32 v30, 16, v30
    v_mov_b32 v252, 0
    v_writelane_b32 v252, s76, 0
    s_add_u32 s54, s70, {KPAD}
    s_mov_b32 m0, s54
    v_mov_b32 v253, s54
    s_waitcnt vmcnt({4+npf})
    """)
    stamp(p, "M", 1)
    x_pack(p, RAW, 32, "s32", "s33")
    publish(p, 32, 40, vSw, vSr, vOut, "s34", "s35", "sc1")
    for i in range(4):
        p.e(f"buffer_load_dwordx4 {aG}, {SSK}, s74 offen offset:{1024*i} {cfg.in_nt} lds")
    A2, FR, C2, E1, E2, E4, E8, E16, E256 = 48, 50, 52, 56, 60, 64, 68, 72, 76
    TMP = 80
    p.e(f"""
    s_waitcnt vmcnt({6+npf})
    v_lshlrev_b32 v{TMP}, 16, v{PAR}
    v_and_b32 v{TMP+1}, 0xffff0000, v{PAR}
    v_mul_f32 v{TMP}, {LOG2E}, v{TMP}
    v_mul_f32 v{TMP+1}, {LOG2E}, v{TMP+1}
    v_exp_f32 v{TMP}, v{TMP}
    v_exp_f32 v{TMP+1}, v{TMP+1}
    v_lshlrev_b32 v{FR}, 16, v{PAR+1}
    v_and_b32 v{FR+1}, 0xffff0000, v{PAR+1}
    v_cvt_pk_bf16_f32 v{TMP}, v{TMP}, v{TMP+1}
    v_mul_f32 v{FR}, v30, v{FR}
    v_mul_f32 v{FR+1}, v30, v{FR+1}
    v_and_b32 v{TMP+1}, 0xffff0000, v{TMP}
    v_lshlrev_b32 v{TMP}, 16, v{TMP}
    v_mul_f32 v{FR}, {INV2PI}, v{FR}
    v_mul_f32 v{FR+1}, {INV2PI}, v{FR+1}
    v_mul_f32 v{A2}, v30, v{TMP}
    v_mul_f32 v{A2+1}, v30, v{TMP+1}
    v_mul_f32 v{A2}, {f32(-math.log2(math.e))}, v{A2}
    v_mul_f32 v{A2+1}, {f32(-math.log2(math.e))}, v{A2+1}
    v_add_f32 v31, v30, v30
    v_lshlrev_b32 v{C2}, 16, v{PAR+2}
    v_and_b32 v{C2+1}, 0xffff0000, v{PAR+2}
    v_lshlrev_b32 v{C2+2}, 16, v{PAR+3}
    v_and_b32 v{C2+3}, 0xffff0000, v{PAR+3}
    """)
    for i in range(4):
        p.e(f"v_mul_f32 v{C2+i}, v31, v{C2+i}")
    for E, pos, sgn in ((E16, 16.0, -1), (E1, 1.0, 1), (E256, 256.0, 1)):
        for j in range(2):
            p.e(f"v_mul_f32 v{TMP+j}, {f32(pos)}, v{A2+j}\nv_mul_f32 v{TMP+2+j}, {f32(sgn*pos)}, v{FR+j}")
        for j in range(2):
            p.e(f"v_exp_f32 v{TMP+j}, v{TMP+j}\nv_fract_f32 v{TMP+2+j}, v{TMP+2+j}")
        for j in range(2):
            p.e(f"v_cos_f32 v{E+j}, v{TMP+2+j}\nv_sin_f32 v{E+2+j}, v{TMP+2+j}")
        p.e(f"v_pk_mul_f32 {vr(E,2)}, {vr(E,2)}, {vr(TMP,2)}\nv_pk_mul_f32 {vr(E+2,2)}, {vr(E+2,2)}, {vr(TMP,2)}")
    p.e(".p2align 3")
    CH = [84, 88]
    S = [C2] + [92 + 4 * i for i in range(7)]
    PK = [120, 122]
    FB, FA, DK = 128, 160, 192
    npos = [0]
    side = []
    def put(src, row):
        k = PK[npos[0] & 1]
        p.e(f"v_cvt_pk_bf16_f32 v{k}, v{src}, v{src+1}\nv_cvt_pk_bf16_f32 v{k+1}, v{src+2}, v{src+3}\n"
            f"ds_write_b64 v243, {vr(k,2)} offset:{544*row}")
        npos[0] += 1
        if npos[0] == cfg.ack_pos:
            p.e("s_waitcnt vmcnt(4)")
            stamp(p, "M", 2)
            flag_store(p, "s36", vZ, vTagM, "sc1")
            p.e(".p2align 3")
        if side: p.e(side.pop(0))
    def chain(start, mult, n, row0):
        cur = start
        for t in range(n):
            if t + 1 < n:
                nxt = CH[t & 1]
                p.e("\n".join(cmul(nxt, cur, mult)))
            put(cur, row0 + t)
            if t + 1 < n: cur = nxt
    def read_frags(dst, addr):
        for s in range(8):
            p.e(f"ds_read_b128 {vr(dst+4*s,4)}, {addr} offset:{64*s}")
    def mfmas(tile):
        out = []
        for s in range(8):
            c = "0" if s == 0 else vr(DK + 4 * tile, 4)
            out.append(f"v_mfma_f32_16x16x32_bf16 {vr(DK+4*tile,4)}, {vr(FA+4*s,4)}, {vr(FB+4*s,4)}, {c}")
        return out
    p.e(f"v_mov_b32_e64 v{PK[0]}, 0\nv_mov_b32 v{PK[1]}, 0x3f803f80\nv_mov_b32_e64 v{PK[1]+1}, 0\nds_write_b64 v243, {vr(PK[1],2)}")
    chain(E16, E16, 15, 1)
    read_frags(FB, "v244")
    for d, s in ((E2, E1), (E4, E2), (E8, E4)):
        p.e("\n".join(cmul(d, s, s)))
    chain(C2, E1, 16, 0)
    read_frags(FA, "v244")
    for k in range(1, 8):
        p.e("\n".join(cmul(S[k], S[k-1], E256)))
    p.e("s_waitcnt lgkmcnt(0)\ns_nop 0")
    side += mfmas(0)
    chain(S[1], E2, 9, 0)
    assert not side
    read_frags(FA, "v245")
    chain(S[2], E4, 2, 0)
    cur = CH[0]
    p.e("s_waitcnt lgkmcnt(2)\ns_nop 0")
    side += mfmas(1)
    p.e("\n".join(cmul(124, cur, E4)))
    chain(124, E4, 3, 2)
    chain(S[3], E4, 5, 5)
    assert not side
    read_frags(FA, "v246")
    chain(S[4], E8, 3, 0)
    p.e("s_waitcnt lgkmcnt(3)\ns_nop 0")
    side += mfmas(2)
    for u in range(1, 4):
        chain(S[4+u], E8, 3, 3 * u)
    assert not side
    read_frags(FA, "v247")
    O = 84
    D0, D1, D2, D3 = DK, DK + 4, DK + 8, DK + 12
    p.e(f"""
    v_add_f32 v{D0}, v252, v{D0}
    v_cvt_pk_bf16_f32 v{O}, v{D0}, v{D0+1}
    v_cvt_pk_bf16_f32 v{O+1}, v{D0+2}, v{D0+3}
    v_cvt_pk_bf16_f32 v{O+2}, v{D1}, v{D1}
    v_cvt_pk_bf16_f32 v{O+3}, v{D1+1}, v{D1+2}
    v_cvt_pk_bf16_f32 v{O+4}, v{D2}, v{D2}
    v_cvt_pk_bf16_f32 v{O+5}, v{D2}, v{D2+1}
    v_cvt_pk_bf16_f32 v{O+6}, v{D2+1}, v{D2+1}
    v_cvt_pk_bf16_f32 v{O+7}, v{D2+2}, v{D2+2}
    s_waitcnt lgkmcnt(0)
    """)
    m3 = mfmas(3)
    p.e("\n".join(m3[:2]))
    p.e(f"ds_write_b64 v248, {vr(O,2)}\n{m3[2]}\nds_write_b64 v248, {vr(O+2,2)} offset:512\n{m3[3]}\n"
        f"ds_write_b128 v249, {vr(O+4,4)} offset:1024\n{m3[4]}\n"
        f"ds_write_b64 v243, v[14:15]\n{m3[5]}\nds_write_b64 v243, v[14:15] offset:{USH}")
    p.e("\n".join(m3[6:]))
    p.e(f"s_waitcnt vmcnt(1)\nds_write_b16 v253, v251")
    for i, (a, b) in enumerate(((0, 0), (0, 0), (0, 1), (1, 1), (1, 1), (1, 1), (2, 2), (2, 2))):
        p.e(f"v_cvt_pk_bf16_f32 v{O+8+i}, v{D3+a}, v{D3+b}")
    p.e(f"""
    ds_write_b128 v250, {vr(O+8,4)} offset:2048
    ds_write_b128 v250, {vr(O+12,4)} offset:2064
    v_mov_b32 v20, 1
    ds_write_b32 v19, v20
    v_xor_b32 v254, 8, v19
    """)
    stamp(p, "M", 3)
    p.e(f"buffer_load_dword {vP}, {aF}, {SWS}, s37 offen sc1")
    for i in range(32, -1, -1):
        p.e(f"ds_read_b64_tr_b16 {vr(Y0+2*i,2)}, {aY} offset:{128*(32-i)}")
    p.e(f"""
    s_mov_b32 s14, 0
L_mpoll:
    s_waitcnt vmcnt(0)
    v_cmp_ne_u32 vcc, {sTAG}, {vP}
    s_cbranch_vccz L_mgo
    buffer_load_dword {vP}, {aF}, {SWS}, s37 offen sc1
    s_add_u32 s14, s14, 1
    s_cmp_lt_u32 s14, {SPIN}
    s_cbranch_scc1 L_mpoll
L_mgo:
    """)
    for i in range(4):
        p.e(f"buffer_load_dwordx4 {vr(STG0+4*i,4)}, {aG}, {SWS}, s12 offen offset:{1024*i} sc1")
    stamp(p, "M", 4)
    p.e("s_setprio 2")
    conv(p)

class Sched:
    def __init__(self, p):
        self.p = p
        self.lds = []
        self.done = 0
        self.when = []
        self.n = 0
        self.q = []
        self.seq = 0
        self.acc_busy = {}
    def add(self, prio, text, tag=None, nb=0, chain=None, after=None):
        self.q.append(dict(prio=prio, seq=self.seq, text=text, tag=tag, nb=nb, chain=chain, after=after)); self.seq += 1
    def issue(self, it):
        for line in it["text"].split("\n"):
            if line.startswith("ds_"):
                self.lds.append(it["tag"]); self.when.append(self.n)
            if line.startswith("s_waitcnt") and "lgkmcnt(0)" in line: self.done = len(self.lds)
            self.p.e(line)
        if it["after"]: it["after"]()
    def pick(self):
        seen = set()
        for it in sorted(self.q, key=lambda d: (d["prio"], d["seq"])):
            c = it["chain"]
            if c is not None:
                if c in seen: continue
                seen.add(c)
            if it["nb"] > self.n: continue
            if self.p.short(Ins(it["text"].split("\n")[0])) > 0: continue
            return it
        return None
    def force(self, pred):
        while True:
            its = [it for it in self.q if pred(it)]
            if not its: return
            first = min(its, key=lambda d: d["seq"])
            pre = [it for it in self.q if it["chain"] is not None and it["chain"] == first["chain"] and it["seq"] < first["seq"]]
            it = min(pre, key=lambda d: d["seq"]) if pre else first
            self.q.remove(it); self.issue(it)
    def wait_for(self, tags):
        self.force(lambda it: it["tag"] in tags)
        idx = max([i for i, t in enumerate(self.lds) if t in tags], default=-1)
        if idx < self.done: return 0
        k = idx + 1
        while k < len(self.lds) and self.n - self.when[k] >= 8: k += 1
        self.p.e(f"s_waitcnt lgkmcnt({min(15, len(self.lds)-k)})")
        self.done = max(k, len(self.lds) - 15)
        return 1
    def mfma(self, text, tags, room=2):
        used = self.wait_for(tags)
        self.p.e(text); self.n += 1
        while room > 0:
            it = self.pick()
            if it is None: break
            self.q.remove(it); self.issue(it)
            room -= len(it["text"].split("\n"))
    def drain(self):
        while self.q:
            it = self.pick()
            if it is None:
                it = min(self.q, key=lambda d: d["seq"])
            self.q.remove(it); self.issue(it)

def add_reduction(S, acc, prev, slot, par, key):
    t2, t1, y = T0 + par, T0 + 2 + par, T0 + 4 + par
    t2p, t1p = T0 + 1 - par, T0 + 3 - par
    ror = "wave_ror:1 row_mask:0x1 bank_mask:0x1"
    shr = "wave_shr:1 row_mask:0xf bank_mask:0xf" + (" bound_ctrl:0" if prev is None else "")
    ops = []
    if prev is not None:
        ops += [f"v_add_f32_dpp v{t2}, v{prev+3}, v{acc+2} {ror}",
                f"v_add_f32_dpp v{t1}, v{t2p}, v{acc+1} {ror}",
                f"v_add_f32_dpp v{y}, v{t1p}, v{acc} {ror}"]
    ops += [f"v_add_f32_dpp v{t2}, v{acc+3}, v{acc+2} {shr}",
            f"v_add_f32_dpp v{t1}, v{t2}, v{acc+1} {shr}",
            f"v_add_f32_dpp v{y}, v{t1}, v{acc} {shr}",
            f"ds_write_b32 {aYw}, v{y} offset:{1024*slot}"]
    for o in ops:
        S.add(2, o, tag=("red", key), chain="red")

def conv(p):
    S = Sched(p)
    def xread(m, hh, sh):
        return f"ds_read_b64_tr_b16 {vr(X0+4*m+2*hh,2)}, {aX} offset:{256*m+128*hh+(USH if sh else 0)}"
    S.lds = [("y",)]; S.when = [-99]
    p.e("s_waitcnt vmcnt(3)")
    S.issue(dict(text=f"ds_write_b128 {aUw}, {vr(STG0,4)}", tag=None, after=None))
    for m in range(2):
        for hh in range(2):
            S.issue(dict(text=xread(m, hh, 0), tag=("x", m), after=None))
    for i in range(1, 4):
        S.issue(dict(text=f"s_waitcnt vmcnt({3-i})\nds_write_b128 {aUw}, {vr(STG0+4*i,4)} offset:{1024*i}", tag=None, after=None))
    first = lambda T: sum(t // 2 + 1 for t in range(T))
    for m in range(2, 16):
        for hh in range(2):
            S.add(1, xread(m, hh, 0), tag=("x", m), nb=max(0, first(2 * m) + m - 10), chain="x")
    S.add(0, f"buffer_load_dword {vP}, {aF}, {SWS}, s38 offen sc1", nb=first(cfg.poll_at), chain="sh")
    S.add(0, f"ds_read_b32 {vP2}, v254", nb=first(cfg.check_at) - 8, chain="sh")
    S.add(0, f"s_waitcnt vmcnt(0) lgkmcnt(0)\nv_cmp_ne_u32 vcc, {sTAG}, {vP}", nb=first(cfg.check_at), chain="sh")
    S.add(0, f"s_cbranch_vccnz L_slow1\nL_back1:\nv_cmp_eq_u32 vcc, 0, {vP2}", chain="sh")
    S.add(0, f"s_cbranch_vccnz L_slow2\nL_back2:", chain="sh")
    for i in range(4):
        S.add(0, f"buffer_load_dwordx4 {vr(STG0+4*i,4)}, {aG}, {SWS}, s13 offen offset:{1024*i} sc1", chain="sh")
    for i in range(18):
        S.add(3, f"ds_read_b64_tr_b16 {vr(LOW0+2*i,2)}, {aYL} offset:{128*(17-i)}", tag=("low",), chain="sh")
    for i in range(4):
        S.add(3, (f"s_waitcnt vmcnt(0)\n" if i == 0 else "") + f"ds_write_b128 {aUw}, {vr(STG0+4*i,4)} offset:{USH+1024*i}",
              tag=("ush",), nb=first(cfg.land_at), chain="sh")
    st = dict(nt=0, prev=None)
    def new_acc():
        k = st["nt"]; st["nt"] += 1
        S.force(lambda it: it["tag"] is not None and it["tag"][0] == "red" and it["tag"][1] <= k - NACC + 1)
        return ACC0 + 4 * (k % NACC), k
    def mm(acc, yreg, m, firstm):
        return f"v_mfma_f32_16x16x32_bf16 {vr(acc,4)}, {vr(yreg,4)}, {vr(X0+4*m,4)}, {'0' if firstm else vr(acc,4)}"
    for T in range(30):
        acc, k = new_acc()
        for m in range(T // 2 + 1):
            S.mfma(mm(acc, Y0 + 2 * (31 - T + 2 * m), m, m == 0), {("x", m), ("y",)})
        add_reduction(S, acc, st["prev"], T, k & 1, k); st["prev"] = acc
        if T == 0: stamp_in_stream(S, 5)
    S.force(lambda it: it["chain"] in ("sh", "x"))
    a30, k30 = new_acc(); a31, k31 = new_acc()
    for m in range(16):
        S.mfma(mm(a31, Y0 + 4 * m, m, m == 0), {("x", m)})
        S.mfma(mm(a30, Y0 + 4 * m + 2, m, m == 0), set(), room=0)
        for i in (2 * m, 2 * m + 1) + ((32,) if m == 15 else ()):
            S.add(1, f"ds_read_b64_tr_b16 {vr(Y0+2*i,2)}, {aYH} offset:{128*(32-i)}", tag=("hi", i), chain="t")
        for hh in range(2):
            S.add(1, xread(m, hh, 1), tag=("xs", m), chain="t")
        for _ in range(2):
            it = S.pick()
            if it: S.q.remove(it); S.issue(it)
    add_reduction(S, a30, st["prev"], 30, k30 & 1, k30)
    add_reduction(S, a31, a30, 31, k31 & 1, k31)
    for h in range(1, 8):
        p.e(f"s_cmp_eq_u32 {sX}, {h}\ns_cbranch_scc1 L_tail{h}")
    base_hist, base = list(p.hist[:-14]), (copy.deepcopy(S.q), list(S.lds), list(S.when), S.done, S.n, dict(st))
    for h in range(8):
        if h:
            p.cut(); p.e(f"L_tail{h}:"); p.hist = list(base_hist)
            S.q, S.lds, S.when, S.done, S.n = copy.deepcopy(base[0]), list(base[1]), list(base[2]), base[3], base[4]
            st.update(base[5])
        topL, topH = 128 + 124 * h, 1984 - 124 * h
        runs = [[(topL - 64 * i, LOW0, i, "low", slot) for i, slot in (((2, 36),) if h == 0 else ()) + ((1, 32), (0, 33))],
                [(topH - 64 * i, Y0, i, "hi", slot) for i, slot in ((1, 34), (0, 35))]]
        for run in runs:
            prev = None
            for w, arr, i0, kind, slot in run:
                acc, k = new_acc()
                for m in range((w + 63) // 128 + 1):
                    i = i0 + 2 * m
                    tags = {("xs", m)} | ({("low",)} if kind == "low" else {("hi", i), ("hi", i + 1)})
                    S.mfma(mm(acc, arr + 2 * i, m, m == 0), tags)
                add_reduction(S, acc, prev, slot, k & 1, k); prev = acc
        S.q = [it for it in S.q if it["chain"] != "t"]
        S.drain()
        if cfg.stamps:
            stamp(p, "M", 6); stamp_flush(p, 7)
        p.e("s_endpgm")
    p.cut()
    p.e(f"""
L_slow1:
    s_mov_b32 s14, 0
L_slow1b:
    buffer_load_dword {vP}, {aF}, {SWS}, s38 offen sc1
    s_add_u32 s14, s14, 1
    s_waitcnt vmcnt(0)
    v_cmp_ne_u32 vcc, {sTAG}, {vP}
    s_cbranch_vccz L_back1
    s_cmp_lt_u32 s14, {SPIN}
    s_cbranch_scc1 L_slow1b
    s_branch L_back1
L_slow2:
    s_mov_b32 s14, 0
L_slow2b:
    ds_read_b32 {vP2}, v254
    s_add_u32 s14, s14, 1
    s_waitcnt lgkmcnt(0)
    v_cmp_eq_u32 vcc, 0, {vP2}
    s_cbranch_vccz L_back2
    s_cmp_lt_u32 s14, {SPIN*8}
    s_cbranch_scc1 L_slow2b
    s_branch L_back2
    """)
    p.cut()

def stamp_in_stream(S, idx):
    if cfg.stamps:
        S.issue(dict(text=f"s_memrealtime s[{80+2*idx}:{81+2*idx}]\ns_waitcnt lgkmcnt(0)", tag=None, after=None))

def kv_compute(p, KR, VR, SW, G, wait_k, wait_v):
    K, W, KS, VT = 80, 102, 110, 126
    p.e(f"s_waitcnt vmcnt({wait_k})\n.p2align 3")
    for j in range(4):
        for c in range(2):
            src = SW + 2 * c + (j >> 1)
            p.e(f"v_and_b32 v{W+2*j+c}, 0xffff0000, v{src}" if j & 1 else f"v_lshlrev_b32_e64 v{W+2*j+c}, 16, v{src}")
    for i in range(11):
        p.e(f"v_lshlrev_b32_e64 v{K+2*i}, 16, v{KR+i}\nv_and_b32 v{K+2*i+1}, 0xffff0000, v{KR+i}")
    for j in (3, 2, 1, 0):
        for t in range(8):
            k = vr(K + 2 * (t + 3 - j), 2)
            if j == 3: p.e(f"v_pk_mul_f32 {vr(KS+2*t,2)}, {k}, {vr(W+2*j,2)}")
            else: p.e(f"v_pk_fma_f32 {vr(KS+2*t,2)}, {k}, {vr(W+2*j,2)}, {vr(KS+2*t,2)}")
    p.e(f"s_waitcnt vmcnt({wait_v})\n.p2align 3")
    for t in range(8):
        p.e(f"v_lshlrev_b32_e64 v{K+2*t}, 16, v{VR+t}\nv_and_b32 v{K+2*t+1}, 0xffff0000, v{VR+t}")
    for t in range(8):
        p.e(f"v_pk_mul_f32 {vr(KS+2*t,2)}, {vr(KS+2*t,2)}, {vr(K+2*t,2)}")
    for c in range(2):
        for i in range(4):
            p.e(f"v_cvt_pk_bf16_f32 v{G+4*c+i}, v{KS+4*i+c}, v{KS+4*i+2+c}")

def data_wave(p):
    vIn, vSw, vSr, vOut, vH, vH2 = "v200", "v201", "v202", "v203", "v204", "v205"
    GQ, GW, KR, VR, SW, KR2, VR2, SW2, G, RB = 2, 14, 26, 37, 46, 50, 61, 70, 128, 136
    vZd, vT = "v206", "v209"
    p.e("L_data:")
    stamp(p, "D", 0)
    p.e(f"""
    s_load_dwordx2 s[12:13], s[0:1], 8
    s_load_dwordx2 s[16:17], s[0:1], 16
    s_load_dwordx2 s[32:33], s[0:1], 24
    s_load_dwordx2 s[36:37], s[0:1], 104
    s_load_dwordx2 s[24:25], s[0:1], 112
    s_setprio 3
    s_mov_b32 s14, {NB}
    s_mov_b32 s15, 0x20000
    s_mov_b32 s18, {NB}
    s_mov_b32 s19, 0x20000
    s_mov_b32 s26, {NB}
    s_mov_b32 s27, 0x20000
    s_mov_b32 s38, {ROW}
    s_mov_b32 s39, 0x20000
    s_mul_i32 s56, {sW}, {STG}
    s_add_u32 s56, s56, {L_STG}
    """)
    lane_transpose_addrs(p, vIn, vSw, vSr, vOut, "s56")
    p.e(f"""
    s_lshl_b32 s57, {sX}, 5
    s_add_u32 s57, s57, {sR}
    s_lshl_b32 s57, s57, 2
    s_add_u32 s57, s57, {sW}
    s_lshl_b32 s57, s57, 1
    s_mul_i32 s58, s57, {ROW}
    v_and_b32 v210, 31, v1
    v_lshrrev_b32 v211, 5, v1
    v_cmp_gt_u32 vcc, 24, v210
    v_lshlrev_b32 v210, 4, v210
    v_mov_b32 v212, 0x40000000
    v_cndmask_b32 v210, v212, v210, vcc
    v_mul_u32_u24 v212, {ROW}, v211
    v_add_u32 v212, v212, v210
    s_lshl_b32 s59, {sX}, 2
    s_add_u32 s60, s59, {sW}
    s_mul_i32 s61, {sR}, {64*ROW}
    s_lshl_b32 s62, s60, 5
    s_add_u32 s61, s61, s62
    s_add_u32 s62, s61, {4*ROW}
    s_sub_u32 s63, s61, {3*ROW}
    v_add_u32 {vH}, s63, {vIn}
    v_and_b32 v213, 7, v1
    s_lshl_b32 s63, s60, 7
    v_lshl_add_u32 v214, v213, 4, s63
    s_lshr_b32 s64, {sR}, 3
    s_add_u32 s64, s64, s59
    s_and_b32 s65, {sR}, 3
    s_add_u32 s66, s65, 32
    s_mul_i32 s67, s64, {64*ROW}
    s_lshl_b32 s68, s66, 5
    s_add_u32 s67, s67, s68
    s_add_u32 s68, s67, {4*ROW}
    s_sub_u32 s63, s67, {3*ROW}
    v_add_u32 {vH2}, s63, {vIn}
    s_lshl_b32 s63, s66, 7
    v_lshl_add_u32 v215, v213, 4, s63
    s_bfe_u32 s69, {sR}, 0x10002
    s_cmp_eq_u32 {sW}, 0
    s_cselect_b32 s70, s69, 2
    s_waitcnt lgkmcnt(0)
    """)
    for i in range(3):
        p.e(f"buffer_load_dwordx4 {vr(GQ+4*i,4)}, v212, {SQ}, s58 offen offset:{384*i}")
    p.e(f"s_load_dword {sTAG}, s[20:21], 0")
    for i in range(3):
        p.e(f"buffer_load_dwordx4 {vr(GW+4*i,4)}, v210, {SGW}, 0 offen offset:{384*i}")
    p.e(f"global_load_dwordx4 {vr(SW,4)}, v214, s[32:33]")
    load_halo(p, KR, vH, SK)
    load_rows(p, KR + 3, vIn, SK, "s61", "s62")
    load_rows(p, VR, vIn, SV, "s61", "s62")
    p.e(f"""
    v_mov_b32 v132, -1
    v_mov_b32 v133, -1
    v_mov_b32 v134, -1
    v_mov_b32 v135, -1
    s_lshl_b32 s54, {sW}, 10
    s_add_u32 s54, s54, {L_Y}
    v_lshl_add_u32 v216, v1, 4, s54
    """)
    for i in range(9):
        p.e(f"ds_write_b128 v216, v[132:135] offset:{4096*i}")
    p.e(f"""
    v_lshlrev_b32 v217, 4, v1
    v_add_u32 v217, {L_Y + 36*1024}, v217
    ds_write_b128 v217, v[132:135]
    v_mov_b32 {vZd}, 0
    s_mul_i32 s71, s60, {16*UST}
    s_lshl_b32 s72, {sR}, 7
    s_add_u32 s71, s71, s72
    s_add_u32 s71, s71, {WS_UT}
    s_add_u32 s72, s71, {8*UST}
    s_mul_i32 s73, s69, 36
    s_add_u32 s73, s73, s66
    s_mul_i32 s73, s73, {16*UST}
    s_lshl_b32 s74, s64, 7
    s_add_u32 s73, s73, s74
    s_add_u32 s73, s73, {WS_UT}
    s_add_u32 s74, s73, {8*UST}
    """)
    flag_index(p, "s75", 0, sX, sW)
    p.e(f"s_mul_i32 s54, {sR}, {cfg.fs}\ns_add_u32 s75, s75, s54")
    flag_index(p, "s76", "s69", 8, "s65")
    p.e(f"""
    s_mul_i32 s54, s64, {cfg.fs}
    s_add_u32 s76, s76, s54
    s_lshl_b32 s77, s57, 3
    s_add_u32 s77, s77, {WS_G}
    v_lshlrev_b32 v211, 3, v211
    s_mov_b32 s34, 0x05040100
    s_mov_b32 s35, 0x07060302
    s_waitcnt lgkmcnt(0)
    s_barrier
    """)
    make_tag(p)
    p.e(f"v_mov_b32 {vT}, {sTAG}\ns_waitcnt vmcnt(20)")
    stamp(p, "D", 1)
    for i in range(12):
        p.e(f"v_dot2_f32_bf16 v208, v{GQ+i}, v{GW+i}, {'0' if i == 0 else 'v208'}")
    for sh in (1, 2, 4, 8):
        p.e(f"v_add_f32_dpp v208, v208, v208 row_shr:{sh} row_mask:0xf bank_mask:0xf bound_ctrl:0")
    p.e(f"""
    v_add_f32_dpp v208, v208, v208 row_bcast:15 row_mask:0xa bank_mask:0xf
    v_mul_f32 v208, {f32(-math.log2(math.e))}, v208
    v_exp_f32 v208, v208
    v_add_f32 v208, 1.0, v208
    v_rcp_f32 v208, v208
    s_mov_b32 exec_lo, 0x80000000
    s_mov_b32 exec_hi, 0x80000000
    buffer_store_dwordx2 v[208:209], v211, {SWS}, s77 offen sc1
    s_mov_b64 exec, -1
    s_cmp_eq_u32 s70, 2
    s_cbranch_scc1 L_dplain
    s_cmp_eq_u32 s70, 1
    s_cbranch_scc1 L_dx
    """)
    hist = list(p.hist)
    p.e(f"global_load_dwordx4 {vr(SW2,4)}, v215, s[32:33]")
    load_halo(p, KR2, vH2, SK)
    load_rows(p, KR2 + 3, vIn, SK, "s67", "s68")
    load_rows(p, VR2, vIn, SV, "s67", "s68")
    kv_compute(p, KR, VR, SW, G, 8 + 21, 21)
    publish(p, G, RB, vSw, vSr, vOut, "s71", "s72", "sc1")
    kv_compute(p, KR2, VR2, SW2, G, 10, 2)
    p.e("s_branch L_dextra")
    p.cut(); p.e("L_dx:"); p.hist = list(hist)
    load_rows(p, VR2, vIn, SQ, "s67", "s68")
    kv_compute(p, KR, VR, SW, G, 8 + 9, 9)
    publish(p, G, RB, vSw, vSr, vOut, "s71", "s72", "sc1")
    p.e("s_waitcnt vmcnt(2)")
    x_pack(p, VR2, G, "s34", "s35")
    p.e("L_dextra:")
    publish(p, G, RB + 8, vSw, vSr, vOut, "s73", "s74", "sc1")
    p.e("s_waitcnt vmcnt(2)")
    flag_store(p, "s75", vZd, vT, "sc1")
    p.e("s_waitcnt vmcnt(1)")
    flag_store(p, "s76", vZd, vT, "sc1")
    p.e("s_branch L_dpub")
    p.cut(); p.e("L_dplain:"); p.hist = list(hist)
    kv_compute(p, KR, VR, SW, G, 8 + 1, 1)
    stamp(p, "D", 2)
    publish(p, G, RB, vSw, vSr, vOut, "s71", "s72", "sc1")
    p.e("s_waitcnt vmcnt(0)")
    flag_store(p, "s75", vZd, vT, "sc1")
    p.e("L_dpub:")
    stamp(p, "D", 3)
    GG, QQ, YY, OO = 2, 24, 44, 48
    p.e(f"""
    s_setprio 0
    s_mul_i32 s54, {sX}, 124
    s_add_u32 s55, s54, 64
    s_sub_u32 s54, 1920, s54
    s_cmp_ge_u32 {sW}, 2
    s_cselect_b32 s57, s54, s55
    s_and_b32 s54, {sW}, 1
    s_lshl_b32 s54, s54, 6
    s_add_u32 s57, s57, s54              ; first row of this wave's shared tile
    s_lshl_b32 s58, s57, 3
    s_add_u32 s58, s58, {WS_G}
    s_lshl_b32 s59, {sW}, 9
    s_add_u32 s59, s59, {WS_G}
    s_add_u32 s60, s59, 4096
    s_add_u32 s61, s59, 8192
    s_add_u32 s62, s59, 12288
    s_mov_b32 s63, {WS_G}
    v_lshlrev_b32 v210, 3, v1
    s_mov_b32 s64, 0
L_gpoll:
    """)
    for i in range(8):
        p.e(f"buffer_load_dwordx2 {vr(GG+2*i,2)}, v210, {SWS}, s{59+(i>>1)} offen offset:{2048*(i&1)} sc1")
    p.e(f"buffer_load_dwordx2 {vr(GG+16,2)}, v210, {SWS}, s58 offen sc1\nbuffer_load_dwordx2 {vr(GG+18,2)}, v210, {SWS}, s63 offen sc1")
    p.e("s_add_u32 s64, s64, 1\ns_waitcnt vmcnt(0)")
    for i in range(10):
        p.e(f"v_xor_b32 v{GG+2*i+1}, {sTAG}, v{GG+2*i+1}")
    p.e(f"""
    v_or3_b32 v211, v{GG+1}, v{GG+3}, v{GG+5}
    v_or3_b32 v211, v211, v{GG+7}, v{GG+9}
    v_or3_b32 v211, v211, v{GG+11}, v{GG+13}
    v_or3_b32 v211, v211, v{GG+15}, v{GG+17}
    v_or_b32 v211, v211, v{GG+19}
    v_cmp_ne_u32 vcc, 0, v211
    s_cbranch_vccz L_gok
    s_cmp_lt_u32 s64, {SPIN}
    s_cbranch_scc1 L_gpoll
L_gok:
    """)
    stamp(p, "D", 4)
    p.e(f"""
    s_lshl_b32 s54, s2, 2
    s_add_u32 s54, s54, {sW}
    s_cmp_lg_u32 s54, 1
    s_cbranch_scc1 L_noepoch
    v_lshlrev_b32 v211, 6, v1
    s_mov_b32 s64, 0
    s_mov_b32 s59, {WS_G + 4}
    s_mov_b32 s60, {WS_G + 4 + 4096}
    s_mov_b32 s61, {WS_G + 4 + 8192}
    s_mov_b32 s62, {WS_G + 4 + 12288}
L_epoll:
    """)
    for i in range(4):
        p.e(f"buffer_load_dword v{212+i}, v211, {SWS}, s{59+i} offen sc1")
    p.e("s_add_u32 s64, s64, 1\ns_waitcnt vmcnt(0)")
    for i in range(4):
        p.e(f"v_xor_b32 v{212+i}, {sTAG}, v{212+i}")
    p.e(f"""
    v_or3_b32 v212, v212, v213, v214
    v_or_b32 v212, v212, v215
    v_cmp_ne_u32 vcc, 0, v212
    s_cbranch_vccz L_eok
    s_cmp_lt_u32 s64, {SPIN}
    s_cbranch_scc1 L_epoll
L_eok:
    """)
    flag_store(p, "0", vZd, vT, "sc1")
    p.e("L_noepoch:")
    for i in range(10):
        p.e(f"v_sub_f32 v{GG+2*i+1}, 1.0, v{GG+2*i}")
    for i in range(20):
        p.e(f"v_mov_b32 v{QQ+i}, 0")
    p.e(f"""
    s_lshl_b32 s54, {sW}, 7
    s_add_u32 s54, s54, {L_SCR + 2*SCR + 32}
    v_lshl_add_u32 v218, v1, 1, s54
    s_lshl_b32 s54, s57, 1
    s_add_u32 s54, s54, {L_SCR + 2*SCR + 32 + USH}
    v_lshl_add_u32 v219, v1, 1, s54      ; x of the shared pair
    v_lshlrev_b32 v220, 1, v1
    v_add_u32 v220, {L_SCR + 2*SCR + 32 + USH}, v220
    v_mul_u32_u24 v221, {ROW}, v1
    s_lshl_b32 s54, {sR}, 2
    v_add_u32 v221, s54, v221
    s_lshl_b32 s54, {sX}, 2
    s_add_u32 s54, s54, {sW}
    s_and_b32 s55, {sW}, 1
    s_cmp_eq_u32 s55, 0
    s_cselect_b32 s55, 4, 0
    s_cmp_eq_u32 s54, 0
    s_cselect_b32 s55, 0, s55            ; first valid lane of the shared tile
    s_cmp_eq_u32 s54, 29
    s_cselect_b32 s65, 60, 64
    v_cmp_le_u32 vcc, s55, v1
    v_cmp_gt_u32 s[66:67], s65, v1
    s_and_b64 vcc, vcc, s[66:67]
    v_mov_b32 v222, 0x40000000
    v_cndmask_b32 v222, v222, v221, vcc
    s_mul_i32 s59, {sW}, {64*ROW}
    s_lshl_b32 s60, {sX}, 7
    s_add_u32 s59, s59, s60
    s_mul_i32 s60, s57, {ROW}
    s_add_u32 s60, s60, 1024
    s_mov_b32 s61, 1024
    """)
    def tile(name, yaddr, yoff, i, qaddr, qoff, oaddr, soff, post=None, first=False):
        q, g, o = QQ + 2 * i, GG + 2 * i, OO + 2 * (i & 1)
        p.e(f"s_mov_b32 s64, 0\nL_t{name}:\nds_read_b128 {vr(YY,4)}, {yaddr} offset:{yoff}")
        if qaddr:
            p.e(f"ds_read_u16_d16_hi v{q}, {qaddr} offset:{qoff}\nds_read_u16_d16_hi v{q+1}, {qaddr} offset:{qoff+SCR}")
        p.e(f"""
        s_waitcnt lgkmcnt(0)
        v_max3_u32 v211, v{YY}, v{YY+1}, v{YY+2}
        v_max_u32 v211, v211, v{YY+3}
        v_cmp_eq_u32 vcc, -1, v211
        s_cbranch_vccz L_u{name}
        s_sleep 1
        s_add_u32 s64, s64, 1
        s_cmp_lt_u32 s64, {SPIN*4}
        s_cbranch_scc1 L_t{name}
L_u{name}:
        """)
        if first: stamp(p, "D", 5)
        p.e(f"""
        v_pk_mul_f32 {vr(q,2)}, {vr(q,2)}, {vr(g,2)} op_sel_hi:[1,0]
        v_pk_mul_f32 {vr(o,2)}, {vr(YY+2,2)}, {vr(g,2)} op_sel:[0,1]
        v_pk_fma_f32 {vr(o,2)}, {vr(q,2)}, {vr(YY,2)}, {vr(o,2)}
        v_cvt_pk_bf16_f32 v{o}, v{o}, v{o+1}
        s_waitcnt vmcnt({cfg.st_inflight})
        buffer_store_dword v{o}, {oaddr}, {SOUT}, {soff} offen
        """)
        if post: post()
    def rest_q():
        for i in range(1, 8):
            p.e(f"ds_read_u16_d16_hi v{QQ+2*i}, v218 offset:{512*i}\nds_read_u16_d16_hi v{QQ+2*i+1}, v218 offset:{512*i+SCR}")
    for i in range(8):
        tile(f"o{i}", "v216", 4096 * i, i, "v218" if i == 0 else None, 0, "v221", "s59", post=rest_q if i == 0 else None, first=i == 0)
        if i < 7: p.e(f"s_add_u32 s59, s59, {256*ROW}")
    p.e("s_cmp_lg_u32 s54, 2\ns_cbranch_scc1 L_nol0")
    tile("z", "v217", 0, 9, "v220", 0, "v221", "s61")
    p.e("L_nol0:")
    tile("s", "v216", 4096 * 8, 8, "v219", 0, "v222", "s60")
    if cfg.stamps:
        p.e("s_waitcnt vmcnt(0)")
        stamp(p, "D", 6); stamp_flush(p, 7)

def build():
    p = Prog()
    prologue(p)
    hist = list(p.hist)
    matrix_wave(p)
    p.hist = hist
    data_wave(p)
    p.e("L_end:\ns_endpgm")
    head = "".join(l for l in open("cdna_kernels/" + KNAME[:-7] + ".s.ref") if l.startswith(";") and "@launch" not in l and "Override" not in l and "grid=ceil" not in l)
    out = head + f"; @launch grid=(256,1,1) block=(512,1,1) lds={LDS_BYTES}\n"
    out += f""".amdgcn_target "amdgcn-amd-amdhsa--gfx950"
.text
.globl {KNAME}
.p2align 8
.type {KNAME},@function
{KNAME}:
"""
    out += p.text()
    out += f""".section .rodata,"a"
.p2align 6
.amdhsa_kernel {KNAME}
  .amdhsa_next_free_vgpr 256
  .amdhsa_next_free_sgpr 96
  .amdhsa_accum_offset 256
  .amdhsa_group_segment_fixed_size 0
  .amdhsa_kernarg_size 136
  .amdhsa_user_sgpr_count 2
  .amdhsa_user_sgpr_kernarg_segment_ptr 1
  .amdhsa_system_sgpr_workgroup_id_x 1
.end_amdhsa_kernel
"""
    return out, p

if __name__ == "__main__":
    dst = sys.argv[1]
    for kv in sys.argv[2:]:
        k, v = kv.split("=")
        old = getattr(cfg, k)
        setattr(cfg, k, (v == "1") if isinstance(old, bool) else type(old)(v))
    text, p = build()
    open(dst, "w").write(text)
    print("wrote", dst, "instructions", sum(1 for i in p.ins if i.states), "nop states", p.nops, "lds", LDS_BYTES)
```

```python
import sys, copy, struct, math
from asmlib import Prog, Ins, sizes

KNAME = "gated_mix__ssm_conv_h3__ssm_conv_s4d__prompt_kernel"
class Cfg:
    stamps = False
    in_nt = ""
    fs = 64
    poll_at = 14
    check_at = 20
    land_at = 27
    st_inflight = 1
    ack_pos = 40
    prefetch_code = True
    probe = ""
cfg = Cfg()

ROW = 1152
NB = 2048 * ROW
WS_G, WS_FLAG, WS_UT, UST = 0x1000, 0x8000, 0x80000, 4224
WS_STAMP = 0x600000
WS_END = WS_UT + 1152 * UST
L_SCR, SCR = 0, 8704
USH = 4128
L_K, KST, KPAD = 34816, 4480, 384
L_Y = L_K + 8 * KST
L_STG, STG = L_Y + 37 * 1024, 2176
L_FLAG = L_STG + 4 * STG
LDS_BYTES = L_FLAG + 64
SPIN = 0x8000
def f32(x): return "0x%08x" % struct.unpack("<I", struct.pack("<f", x))[0]
LOG2E, INV2PI = f32(math.log2(math.e)), f32(1 / (2 * math.pi))

sWAVE, sX, sR, sW, sTAG = "s3", "s4", "s5", "s6", "s7"
SQ, SK, SV, SWS, SOUT, SSK, SGW = "s[8:11]", "s[12:15]", "s[16:19]", "s[20:23]", "s[24:27]", "s[28:31]", "s[36:39]"

def vr(a, n=1): return f"v{a}" if n == 1 else f"v[{a}:{a+n-1}]"

nstamp = {}
def stamp(p, role, idx):
    if cfg.stamps:
        p.e(f"s_memrealtime s[{80+2*idx}:{81+2*idx}]\ns_waitcnt lgkmcnt(0)")
probe_id = [0]
def stamp_flush(p, n, role="M"):
    if not cfg.stamps: return
    if cfg.probe:
        if cfg.probe[0] == role:
            i = int(cfg.probe[1]); probe_id[0] += 1
            p.e(f"s_add_u32 s94, s{80+2*i}, 4000\nL_probe{probe_id[0]}:\ns_sleep 2\ns_memrealtime s[54:55]\ns_waitcnt lgkmcnt(0)\n"
                f"s_sub_u32 s54, s54, s94\ns_cmp_lt_i32 s54, 0\ns_cbranch_scc1 L_probe{probe_id[0]}")
        return
    p.e(f"s_lshl_b32 s54, s2, 3\ns_add_u32 s54, s54, {sWAVE}\ns_lshl_b32 s54, s54, 6\ns_add_u32 s54, s54, {WS_STAMP}")
    p.e("v_mov_b32 v1, 0")
    for i in range(n):
        p.e(f"v_mov_b32 v2, s{80+2*i}\nbuffer_store_dword v2, v1, {SWS}, s54 offen offset:{4*i}")

def flag_index(p, dst, kind, strip, quarter, tmp="s55"):
    p.e(f"s_mul_i32 {dst}, {kind}, 9\ns_add_u32 {dst}, {dst}, {strip}\ns_lshl_b32 {dst}, {dst}, 2\n"
        f"s_add_u32 {dst}, {dst}, {quarter}\ns_mul_i32 {dst}, {dst}, {32*cfg.fs}\ns_add_u32 {dst}, {dst}, {WS_FLAG}")

def lane_transpose_addrs(p, vIn, vSw, vSr, vOut, stg_sgpr, lane="v1", t="v232", t2="v233"):
    p.e(f"""
    v_lshrrev_b32 {t}, 3, {lane}
    v_and_b32 {t2}, 7, {lane}
    v_mul_u32_u24 {vIn}, {8*ROW}, {t}
    v_lshl_add_u32 {vIn}, {t2}, 2, {vIn}
    v_mul_u32_u24 {vSw}, 272, {t2}
    v_lshl_add_u32 {vSw}, {t}, 4, {vSw}
    v_add_u32 {vSw}, {stg_sgpr}, {vSw}
    v_mul_u32_u24 {vOut}, {UST}, {t}
    v_lshl_add_u32 {vOut}, {t2}, 4, {vOut}
    v_lshrrev_b32 {t}, 4, {lane}
    v_mul_u32_u24 {vSr}, 272, {t}
    v_and_b32 {t2}, 15, {lane}
    v_lshl_add_u32 {vSr}, {t2}, 4, {vSr}
    v_add_u32 {vSr}, {stg_sgpr}, {vSr}
    """)

def load_rows(p, dst, vIn, srd, s0, s4):
    for i in range(8):
        p.e(f"buffer_load_dword v{dst+i}, {vIn}, {srd}, {s0 if i < 4 else s4} offen offset:{(i & 3)*ROW} {cfg.in_nt}")
def load_halo(p, dst, vH, srd):
    for i in range(3):
        p.e(f"buffer_load_dword v{dst+i}, {vH}, {srd}, 0 offen offset:{i*ROW} {cfg.in_nt}")

def publish(p, G, RB, vSw, vSr, vOut, sA, sB, flavor):
    p.e(f"""
    ds_write_b128 {vSw}, {vr(G,4)}
    ds_write_b128 {vSw}, {vr(G+4,4)} offset:128
    ds_read_b128 {vr(RB,4)}, {vSr}
    ds_read_b128 {vr(RB+4,4)}, {vSr} offset:{4*272}
    s_waitcnt lgkmcnt(1)
    buffer_store_dwordx4 {vr(RB,4)}, {vOut}, {SWS}, {sA} offen {flavor}
    s_waitcnt lgkmcnt(0)
    buffer_store_dwordx4 {vr(RB+4,4)}, {vOut}, {SWS}, {sB} offen {flavor}
    """)

def x_pack(p, raw, G, sLo, sHi):
    for i in range(4):
        p.e(f"v_perm_b32 v{G+i}, v{raw+2*i+1}, v{raw+2*i}, {sLo}")
    for i in range(4):
        p.e(f"v_perm_b32 v{G+4+i}, v{raw+2*i+1}, v{raw+2*i}, {sHi}")

def flag_store(p, sOff, vZero, vTag, flavor):
    p.e(f"s_mov_b64 exec, 1\nbuffer_store_dword {vTag}, {vZero}, {SWS}, {sOff} offen {flavor}\ns_mov_b64 exec, -1")

def prologue(p):
    p.e(f"""
    s_cmp_ge_u32 s2, 256
    s_cbranch_scc1 L_end
    s_load_dwordx2 s[8:9], s[0:1], 0
    s_load_dwordx2 s[20:21], s[0:1], 128
    v_lshrrev_b32 v2, 6, v0
    v_and_b32 v1, 63, v0
    v_readfirstlane_b32 {sWAVE}, v2
    s_and_b32 {sX}, s2, 7
    s_lshr_b32 {sR}, s2, 3
    s_mov_b32 s10, {NB}
    s_mov_b32 s11, 0x20000
    s_mov_b32 s22, {WS_STAMP + 0x20000 if cfg.stamps else WS_END}
    s_mov_b32 s23, 0x20000
    s_and_b32 {sW}, {sWAVE}, 3
    s_cmp_ge_u32 {sWAVE}, 4
    s_cbranch_scc1 L_data
    """)

def make_tag(p):
    p.e(f"s_mul_i32 {sTAG}, {sTAG}, 0x0019660d\ns_add_u32 {sTAG}, {sTAG}, 0x3c6ef35f")

Y0, X0, ACC0, NACC, LOW0, STG0, T0 = 2, 68, 132, 8, 164, 200, 216
aY, aX, aYH, aYL, aYw, aUw, aG, aF, vP, vZ, vTagM = ("v%d" % i for i in range(222, 233))
vP2 = "v237"

def cmul(d, a, w):
    return [f"v_pk_mul_f32 {vr(d,2)}, {vr(a,2)}, {vr(w,2)}",
            f"v_pk_mul_f32 {vr(d+2,2)}, {vr(a,2)}, {vr(w+2,2)}",
            f"v_pk_fma_f32 {vr(d,2)}, {vr(a+2,2)}, {vr(w+2,2)}, {vr(d,2)} neg_lo:[1,0,0] neg_hi:[1,0,0]",
            f"v_pk_fma_f32 {vr(d+2,2)}, {vr(a+2,2)}, {vr(w,2)}, {vr(d+2,2)}"]

def matrix_wave(p):
    vIn, vSw, vSr, vOut = "v234", "v235", "v236", "v238"
    RAW, PAR = 2, 10
    stamp(p, "M", 0)
    p.e(f"""
    s_load_dwordx2 s[28:29], s[0:1], 32
    s_load_dwordx8 s[40:47], s[0:1], 56
    s_load_dwordx4 s[48:51], s[0:1], 88
    s_load_dwordx2 s[52:53], s[0:1], 40
    s_mov_b32 s30, {NB}
    s_mov_b32 s31, 0x20000
    s_mul_i32 s56, {sW}, {SCR}
    """)
    lane_transpose_addrs(p, vIn, vSw, vSr, vOut, "s56")
    p.e(f"""
    s_lshr_b32 s57, {sR}, 3
    s_lshl_b32 s58, {sX}, 2
    s_add_u32 s58, s58, s57
    s_and_b32 s59, {sR}, 7               ; strip
    s_lshl_b32 s60, s59, 2
    s_add_u32 s60, s60, {sW}
    s_mul_i32 s61, s58, {64*ROW}
    s_lshl_b32 s62, s60, 5
    s_add_u32 s61, s61, s62
    s_add_u32 s62, s61, {4*ROW}
    s_and_b32 s63, {sW}, 1
    s_lshl_b32 s64, {sR}, 1
    s_add_u32 s64, s64, s63
    s_lshl_b32 s65, {sX}, 6
    s_add_u32 s65, s65, s64
    s_add_u32 s66, s64, 512              ; shared channel
    s_cmp_ge_u32 {sW}, 2
    s_cselect_b32 s67, s65, s66
    s_cselect_b32 s68, s66, s65
    s_cselect_b32 s69, 0, 6
    s_cselect_b32 s70, 2, 0
    s_add_u32 s69, s69, {sW}
    s_add_u32 s70, s70, {sW}
    s_mul_i32 s69, s69, {KST}
    s_mul_i32 s70, s70, {KST}
    s_add_u32 s69, s69, {L_K}
    s_add_u32 s70, s70, {L_K}
    s_lshl_b32 s71, s67, 8
    v_lshl_add_u32 v239, v1, 2, s71
    s_lshr_b32 s72, s67, 1
    s_lshl_b32 s72, s72, 2
    s_lshr_b32 s73, s68, 1
    s_lshl_b32 s73, s73, 2
    s_lshl_b32 s74, s68, 12
    s_waitcnt lgkmcnt(0)
    """)
    load_rows(p, RAW, vIn, SQ, "s61", "s62")
    p.e(f"""
    s_load_dword {sTAG}, s[20:21], 0
    s_load_dword s75, s[48:49], s72
    s_load_dword s76, s[50:51], s72
    s_load_dword s77, s[52:53], s73
    s_load_dword s78, s[28:29], s74
    global_load_dword v{PAR}, v239, s[40:41]
    global_load_dword v{PAR+1}, v239, s[42:43]
    global_load_dword v{PAR+2}, v239, s[44:45]
    global_load_dword v{PAR+3}, v239, s[46:47]
    """)
    npf = 0
    if cfg.prefetch_code:
        p.e(f"""
    s_getpc_b64 s[54:55]
L_pc:
    v_lshlrev_b32 v240, 7, v0
    v_min_u32 v240, L_end-L_pc, v240
    v_mov_b32 v241, s55
    v_add_co_u32 v240, vcc, s54, v240
    v_addc_co_u32 v241, vcc, 0, v241, vcc
    global_load_dword v242, v[240:241], off
    """)
        npf = 1
    p.e(f"""
    v_mov_b32 {vZ}, 0
    v_mov_b32 v14, 0
    v_mov_b32 v15, 0
    v_lshlrev_b32 v16, 3, v1
    v_add_u32 v17, s69, v16
    v_add_u32 v18, s70, v16
    ds_write_b64 v17, v[14:15]
    ds_write_b64 v18, v[14:15]
    s_lshl_b32 s54, {sW}, 2
    s_add_u32 s54, s54, {L_FLAG}
    v_mov_b32 v19, s54
    ds_write_b32 v19, v14
    v_add_u32 v243, s56, v16
    v_lshrrev_b32 v20, 4, v1             ; lane>>4
    v_bfe_u32 v21, v1, 2, 2              ; (lane>>2)&3
    v_and_b32 v22, 3, v1
    v_and_b32 v23, 15, v1
    v_lshlrev_b32 v24, 5, v20
    v_lshl_add_u32 v24, v21, 3, v24      ; 32*qq + 8*e
    v_lshl_add_u32 {aX}, v22, 3, v24
    s_add_u32 s54, s56, 8
    v_add_u32 {aX}, s54, {aX}
    v_lshlrev_b32 v25, 5, v22
    v_sub_u32 v25, v25, v24              ; 32*c - 32*qq - 8*e
    s_mul_i32 s54, {sW}, {KST}
    s_add_u32 s54, s54, {L_K + KPAD + 24 - 128}
    v_add_u32 {aY}, s54, v25
    s_mul_i32 s55, {sX}, 248
    s_add_u32 s54, s54, {4*KST}
    s_sub_u32 s79, s54, s55
    v_add_u32 {aYH}, s79, v25
    s_add_u32 s79, s54, s55
    s_sub_u32 s79, s79, {2*(64*17 - 128) - 128}
    v_add_u32 {aYL}, s79, v25
    s_lshl_b32 s54, {sW}, 2
    s_add_u32 s54, s54, {L_Y}
    v_lshl_add_u32 {aYw}, v1, 4, s54
    v_lshlrev_b32 {aG}, 4, v1
    s_add_u32 s54, s56, 32
    v_add_u32 {aUw}, s54, {aG}
    v_and_b32 {aF}, 31, v1
    v_mul_u32_u24 {aF}, {cfg.fs}, {aF}
    v_lshlrev_b32 v26, 4, v20
    v_add_u32 v26, s56, v26
    v_mov_b32 v31, 544
    v_mad_u32_u24 v244, v23, v31, v26
    v_lshl_add_u32 v27, v21, 1, v22
    v_mad_u32_u24 v245, v27, v31, v26
    v_lshrrev_b32 v28, 1, v21
    v_add_u32 v27, v27, v28
    v_mad_u32_u24 v246, v27, v31, v26
    v_mad_u32_u24 v27, v21, 3, v22
    v_mad_u32_u24 v247, v27, v31, v26
    s_add_u32 s54, s69, {KPAD}
    v_lshl_add_u32 v27, v23, 5, s54      ; K + 32*j
    v_lshl_add_u32 v248, v20, 3, v27
    v_lshrrev_b32 v28, 1, v20
    v_and_b32 v29, 1, v20
    v_lshl_add_u32 v249, v28, 9, v27
    v_lshl_add_u32 v249, v29, 4, v249
    v_lshl_add_u32 v250, v20, 9, v27
    s_mov_b32 s32, 0x05040100
    s_mov_b32 s33, 0x07060302
    s_add_u32 s34, s60, 36
    s_mul_i32 s34, s34, {16*UST}
    s_lshl_b32 s35, s58, 7
    s_add_u32 s34, s34, s35
    s_add_u32 s34, s34, {WS_UT}
    s_add_u32 s35, s34, {8*UST}
    """)
    flag_index(p, "s36", 1, "s59", sW)
    p.e(f"s_mul_i32 s54, s58, {cfg.fs}\ns_add_u32 s36, s36, s54\ns_lshr_b32 s39, {sW}, 1")
    flag_index(p, "s37", "s39", sX, "s57")
    flag_index(p, "s38", "s39", 8, "s57")
    p.e(f"""
    s_mul_i32 s39, s39, 576
    s_add_u32 s12, s39, s65
    s_add_u32 s13, s39, s66
    s_mul_i32 s12, s12, {UST}
    s_mul_i32 s13, s13, {UST}
    s_add_u32 s12, s12, {WS_UT}
    s_add_u32 s13, s13, {WS_UT}
    s_lshl_b32 s63, s63, 4
    s_waitcnt lgkmcnt(0)
    s_barrier
    """)
    make_tag(p)
    p.e(f"""
    s_lshr_b32 s75, s75, s63
    s_lshr_b32 s76, s76, s63
    s_lshr_b32 s77, s77, s63
    s_lshl_b32 s75, s75, 16
    s_lshl_b32 s76, s76, 16
    s_lshl_b32 s77, s77, 16
    s_lshl_b32 s78, s78, 16
    v_mov_b32 {vTagM}, {sTAG}
    v_mov_b32 v30, s75
    v_mul_f32 v30, {LOG2E}, v30
    v_exp_f32 v30, v30
    v_mov_b32 v251, s77
    v_add_f32 v251, s78, v251
    v_cvt_pk_bf16_f32 v251, v251, v251
    v_cvt_pk_bf16_f32 v30, v30, v30
    v_lshlrev_b32 v30, 16, v30
    v_mov_b32 v252, 0
    v_writelane_b32 v252, s76, 0
    s_add_u32 s54, s70, {KPAD}
    s_mov_b32 m0, s54
    v_mov_b32 v253, s54
    s_waitcnt vmcnt({4+npf})
    """)
    stamp(p, "M", 1)
    x_pack(p, RAW, 32, "s32", "s33")
    publish(p, 32, 40, vSw, vSr, vOut, "s34", "s35", "sc1")
    for i in range(4):
        p.e(f"buffer_load_dwordx4 {aG}, {SSK}, s74 offen offset:{1024*i} {cfg.in_nt} lds")
    A2, FR, C2, E1, E2, E4, E8, E16, E256 = 48, 50, 52, 56, 60, 64, 68, 72, 76
    TMP = 80
    p.e(f"""
    s_waitcnt vmcnt({6+npf})
    v_lshlrev_b32 v{TMP}, 16, v{PAR}
    v_and_b32 v{TMP+1}, 0xffff0000, v{PAR}
    v_mul_f32 v{TMP}, {LOG2E}, v{TMP}
    v_mul_f32 v{TMP+1}, {LOG2E}, v{TMP+1}
    v_exp_f32 v{TMP}, v{TMP}
    v_exp_f32 v{TMP+1}, v{TMP+1}
    v_lshlrev_b32 v{FR}, 16, v{PAR+1}
    v_and_b32 v{FR+1}, 0xffff0000, v{PAR+1}
    v_cvt_pk_bf16_f32 v{TMP}, v{TMP}, v{TMP+1}
    v_mul_f32 v{FR}, v30, v{FR}
    v_mul_f32 v{FR+1}, v30, v{FR+1}
    v_and_b32 v{TMP+1}, 0xffff0000, v{TMP}
    v_lshlrev_b32 v{TMP}, 16, v{TMP}
    v_mul_f32 v{FR}, {INV2PI}, v{FR}
    v_mul_f32 v{FR+1}, {INV2PI}, v{FR+1}
    v_mul_f32 v{A2}, v30, v{TMP}
    v_mul_f32 v{A2+1}, v30, v{TMP+1}
    v_mul_f32 v{A2}, {f32(-math.log2(math.e))}, v{A2}
    v_mul_f32 v{A2+1}, {f32(-math.log2(math.e))}, v{A2+1}
    v_add_f32 v31, v30, v30
    v_lshlrev_b32 v{C2}, 16, v{PAR+2}
    v_and_b32 v{C2+1}, 0xffff0000, v{PAR+2}
    v_lshlrev_b32 v{C2+2}, 16, v{PAR+3}
    v_and_b32 v{C2+3}, 0xffff0000, v{PAR+3}
    """)
    for i in range(4):
        p.e(f"v_mul_f32 v{C2+i}, v31, v{C2+i}")
    for E, pos, sgn in ((E16, 16.0, -1), (E1, 1.0, 1), (E256, 256.0, 1)):
        for j in range(2):
            p.e(f"v_mul_f32 v{TMP+j}, {f32(pos)}, v{A2+j}\nv_mul_f32 v{TMP+2+j}, {f32(sgn*pos)}, v{FR+j}")
        for j in range(2):
            p.e(f"v_exp_f32 v{TMP+j}, v{TMP+j}\nv_fract_f32 v{TMP+2+j}, v{TMP+2+j}")
        for j in range(2):
            p.e(f"v_cos_f32 v{E+j}, v{TMP+2+j}\nv_sin_f32 v{E+2+j}, v{TMP+2+j}")
        p.e(f"v_pk_mul_f32 {vr(E,2)}, {vr(E,2)}, {vr(TMP,2)}\nv_pk_mul_f32 {vr(E+2,2)}, {vr(E+2,2)}, {vr(TMP,2)}")
    p.e(".p2align 3")
    CH = [84, 88]
    S = [C2] + [92 + 4 * i for i in range(7)]
    PK = [120, 122]
    FB, FA, DK = 128, 160, 192
    npos = [0]
    side = []
    def put(src, row):
        k = PK[npos[0] & 1]
        p.e(f"v_cvt_pk_bf16_f32 v{k}, v{src}, v{src+1}\nv_cvt_pk_bf16_f32 v{k+1}, v{src+2}, v{src+3}\n"
            f"ds_write_b64 v243, {vr(k,2)} offset:{544*row}")
        npos[0] += 1
        if npos[0] == cfg.ack_pos:
            p.e("s_waitcnt vmcnt(4)")
            stamp(p, "M", 2)
            flag_store(p, "s36", vZ, vTagM, "sc1")
            p.e(".p2align 3")
        if side: p.e(side.pop(0))
    def chain(start, mult, n, row0):
        cur = start
        for t in range(n):
            if t + 1 < n:
                nxt = CH[t & 1]
                p.e("\n".join(cmul(nxt, cur, mult)))
            put(cur, row0 + t)
            if t + 1 < n: cur = nxt
    def read_frags(dst, addr):
        for s in range(8):
            p.e(f"ds_read_b128 {vr(dst+4*s,4)}, {addr} offset:{64*s}")
    def mfmas(tile):
        out = []
        for s in range(8):
            c = "0" if s == 0 else vr(DK + 4 * tile, 4)
            out.append(f"v_mfma_f32_16x16x32_bf16 {vr(DK+4*tile,4)}, {vr(FA+4*s,4)}, {vr(FB+4*s,4)}, {c}")
        return out
    p.e(f"v_mov_b32_e64 v{PK[0]}, 0\nv_mov_b32 v{PK[1]}, 0x3f803f80\nv_mov_b32_e64 v{PK[1]+1}, 0\nds_write_b64 v243, {vr(PK[1],2)}")
    chain(E16, E16, 15, 1)
    read_frags(FB, "v244")
    for d, s in ((E2, E1), (E4, E2), (E8, E4)):
        p.e("\n".join(cmul(d, s, s)))
    chain(C2, E1, 16, 0)
    read_frags(FA, "v244")
    for k in range(1, 8):
        p.e("\n".join(cmul(S[k], S[k-1], E256)))
    p.e("s_waitcnt lgkmcnt(0)\ns_nop 0")
    side += mfmas(0)
    chain(S[1], E2, 9, 0)
    assert not side
    read_frags(FA, "v245")
    chain(S[2], E4, 2, 0)
    cur = CH[0]
    p.e("s_waitcnt lgkmcnt(2)\ns_nop 0")
    side += mfmas(1)
    p.e("\n".join(cmul(124, cur, E4)))
    chain(124, E4, 3, 2)
    chain(S[3], E4, 5, 5)
    assert not side
    read_frags(FA, "v246")
    chain(S[4], E8, 3, 0)
    p.e("s_waitcnt lgkmcnt(3)\ns_nop 0")
    side += mfmas(2)
    for u in range(1, 4):
        chain(S[4+u], E8, 3, 3 * u)
    assert not side
    read_frags(FA, "v247")
    O = 84
    D0, D1, D2, D3 = DK, DK + 4, DK + 8, DK + 12
    p.e(f"""
    v_add_f32 v{D0}, v252, v{D0}
    v_cvt_pk_bf16_f32 v{O}, v{D0}, v{D0+1}
    v_cvt_pk_bf16_f32 v{O+1}, v{D0+2}, v{D0+3}
    v_cvt_pk_bf16_f32 v{O+2}, v{D1}, v{D1}
    v_cvt_pk_bf16_f32 v{O+3}, v{D1+1}, v{D1+2}
    v_cvt_pk_bf16_f32 v{O+4}, v{D2}, v{D2}
    v_cvt_pk_bf16_f32 v{O+5}, v{D2}, v{D2+1}
    v_cvt_pk_bf16_f32 v{O+6}, v{D2+1}, v{D2+1}
    v_cvt_pk_bf16_f32 v{O+7}, v{D2+2}, v{D2+2}
    s_waitcnt lgkmcnt(0)
    """)
    m3 = mfmas(3)
    p.e("\n".join(m3[:2]))
    p.e(f"ds_write_b64 v248, {vr(O,2)}\n{m3[2]}\nds_write_b64 v248, {vr(O+2,2)} offset:512\n{m3[3]}\n"
        f"ds_write_b128 v249, {vr(O+4,4)} offset:1024\n{m3[4]}\n"
        f"ds_write_b64 v243, v[14:15]\n{m3[5]}\nds_write_b64 v243, v[14:15] offset:{USH}")
    p.e("\n".join(m3[6:]))
    p.e(f"s_waitcnt vmcnt(1)\nds_write_b16 v253, v251")
    for i, (a, b) in enumerate(((0, 0), (0, 0), (0, 1), (1, 1), (1, 1), (1, 1), (2, 2), (2, 2))):
        p.e(f"v_cvt_pk_bf16_f32 v{O+8+i}, v{D3+a}, v{D3+b}")
    p.e(f"""
    ds_write_b128 v250, {vr(O+8,4)} offset:2048
    ds_write_b128 v250, {vr(O+12,4)} offset:2064
    v_mov_b32 v20, 1
    ds_write_b32 v19, v20
    v_xor_b32 v254, 8, v19
    """)
    stamp(p, "M", 3)
    p.e(f"buffer_load_dword {vP}, {aF}, {SWS}, s37 offen sc1")
    for i in range(32, -1, -1):
        p.e(f"ds_read_b64_tr_b16 {vr(Y0+2*i,2)}, {aY} offset:{128*(32-i)}")
    p.e(f"""
    s_mov_b32 s14, 0
L_mpoll:
    s_waitcnt vmcnt(0)
    v_cmp_ne_u32 vcc, {sTAG}, {vP}
    s_cbranch_vccz L_mgo
    buffer_load_dword {vP}, {aF}, {SWS}, s37 offen sc1
    s_add_u32 s14, s14, 1
    s_cmp_lt_u32 s14, {SPIN}
    s_cbranch_scc1 L_mpoll
L_mgo:
    """)
    for i in range(4):
        p.e(f"buffer_load_dwordx4 {vr(STG0+4*i,4)}, {aG}, {SWS}, s12 offen offset:{1024*i} sc1")
    stamp(p, "M", 4)
    p.e("s_setprio 2")
    conv(p)

class Sched:
    def __init__(self, p):
        self.p = p
        self.lds = []
        self.done = 0
        self.when = []
        self.n = 0
        self.q = []
        self.seq = 0
        self.acc_busy = {}
    def add(self, prio, text, tag=None, nb=0, chain=None, after=None):
        self.q.append(dict(prio=prio, seq=self.seq, text=text, tag=tag, nb=nb, chain=chain, after=after)); self.seq += 1
    def issue(self, it):
        for line in it["text"].split("\n"):
            if line.startswith("ds_"):
                self.lds.append(it["tag"]); self.when.append(self.n)
            if line.startswith("s_waitcnt") and "lgkmcnt(0)" in line: self.done = len(self.lds)
            self.p.e(line)
        if it["after"]: it["after"]()
    def pick(self):
        seen = set()
        for it in sorted(self.q, key=lambda d: (d["prio"], d["seq"])):
            c = it["chain"]
            if c is not None:
                if c in seen: continue
                seen.add(c)
            if it["nb"] > self.n: continue
            if self.p.short(Ins(it["text"].split("\n")[0])) > 0: continue
            return it
        return None
    def force(self, pred):
        while True:
            its = [it for it in self.q if pred(it)]
            if not its: return
            first = min(its, key=lambda d: d["seq"])
            pre = [it for it in self.q if it["chain"] is not None and it["chain"] == first["chain"] and it["seq"] < first["seq"]]
            it = min(pre, key=lambda d: d["seq"]) if pre else first
            self.q.remove(it); self.issue(it)
    def wait_for(self, tags):
        self.force(lambda it: it["tag"] in tags)
        idx = max([i for i, t in enumerate(self.lds) if t in tags], default=-1)
        if idx < self.done: return 0
        k = idx + 1
        while k < len(self.lds) and self.n - self.when[k] >= 8: k += 1
        self.p.e(f"s_waitcnt lgkmcnt({min(15, len(self.lds)-k)})")
        self.done = max(k, len(self.lds) - 15)
        return 1
    def mfma(self, text, tags, room=2):
        used = self.wait_for(tags)
        self.p.e(text); self.n += 1
        while room > 0:
            it = self.pick()
            if it is None: break
            self.q.remove(it); self.issue(it)
            room -= len(it["text"].split("\n"))
    def drain(self):
        while self.q:
            it = self.pick()
            if it is None:
                it = min(self.q, key=lambda d: d["seq"])
            self.q.remove(it); self.issue(it)

def add_reduction(S, acc, prev, slot, par, key):
    t2, t1, y = T0 + par, T0 + 2 + par, T0 + 4 + par
    t2p, t1p = T0 + 1 - par, T0 + 3 - par
    ror = "wave_ror:1 row_mask:0x1 bank_mask:0x1"
    shr = "wave_shr:1 row_mask:0xf bank_mask:0xf" + (" bound_ctrl:0" if prev is None else "")
    ops = []
    if prev is not None:
        ops += [f"v_add_f32_dpp v{t2}, v{prev+3}, v{acc+2} {ror}",
                f"v_add_f32_dpp v{t1}, v{t2p}, v{acc+1} {ror}",
                f"v_add_f32_dpp v{y}, v{t1p}, v{acc} {ror}"]
    ops += [f"v_add_f32_dpp v{t2}, v{acc+3}, v{acc+2} {shr}",
            f"v_add_f32_dpp v{t1}, v{t2}, v{acc+1} {shr}",
            f"v_add_f32_dpp v{y}, v{t1}, v{acc} {shr}",
            f"ds_write_b32 {aYw}, v{y} offset:{1024*slot}"]
    for o in ops:
        S.add(2, o, tag=("red", key), chain="red")

def conv(p):
    S = Sched(p)
    def xread(m, hh, sh):
        return f"ds_read_b64_tr_b16 {vr(X0+4*m+2*hh,2)}, {aX} offset:{256*m+128*hh+(USH if sh else 0)}"
    S.lds = [("y",)]; S.when = [-99]
    p.e("s_waitcnt vmcnt(3)")
    S.issue(dict(text=f"ds_write_b128 {aUw}, {vr(STG0,4)}", tag=None, after=None))
    for m in range(2):
        for hh in range(2):
            S.issue(dict(text=xread(m, hh, 0), tag=("x", m), after=None))
    for i in range(1, 4):
        S.issue(dict(text=f"s_waitcnt vmcnt({3-i})\nds_write_b128 {aUw}, {vr(STG0+4*i,4)} offset:{1024*i}", tag=None, after=None))
    first = lambda T: sum(t // 2 + 1 for t in range(T))
    for m in range(2, 16):
        for hh in range(2):
            S.add(1, xread(m, hh, 0), tag=("x", m), nb=max(0, first(2 * m) + m - 10), chain="x")
    S.add(0, f"buffer_load_dword {vP}, {aF}, {SWS}, s38 offen sc1", nb=first(cfg.poll_at), chain="sh")
    S.add(0, f"ds_read_b32 {vP2}, v254", nb=first(cfg.check_at) - 8, chain="sh")
    S.add(0, f"s_waitcnt vmcnt(0) lgkmcnt(0)\nv_cmp_ne_u32 vcc, {sTAG}, {vP}", nb=first(cfg.check_at), chain="sh")
    S.add(0, f"s_cbranch_vccnz L_slow1\nL_back1:\nv_cmp_eq_u32 vcc, 0, {vP2}", chain="sh")
    S.add(0, f"s_cbranch_vccnz L_slow2\nL_back2:", chain="sh")
    for i in range(4):
        S.add(0, f"buffer_load_dwordx4 {vr(STG0+4*i,4)}, {aG}, {SWS}, s13 offen offset:{1024*i} sc1", chain="sh")
    for i in range(18):
        S.add(3, f"ds_read_b64_tr_b16 {vr(LOW0+2*i,2)}, {aYL} offset:{128*(17-i)}", tag=("low",), chain="sh")
    for i in range(4):
        S.add(3, (f"s_waitcnt vmcnt(0)\n" if i == 0 else "") + f"ds_write_b128 {aUw}, {vr(STG0+4*i,4)} offset:{USH+1024*i}",
              tag=("ush",), nb=first(cfg.land_at), chain="sh")
    st = dict(nt=0, prev=None)
    def new_acc():
        k = st["nt"]; st["nt"] += 1
        S.force(lambda it: it["tag"] is not None and it["tag"][0] == "red" and it["tag"][1] <= k - NACC + 1)
        return ACC0 + 4 * (k % NACC), k
    def mm(acc, yreg, m, firstm):
        return f"v_mfma_f32_16x16x32_bf16 {vr(acc,4)}, {vr(yreg,4)}, {vr(X0+4*m,4)}, {'0' if firstm else vr(acc,4)}"
    for T in range(30):
        acc, k = new_acc()
        for m in range(T // 2 + 1):
            S.mfma(mm(acc, Y0 + 2 * (31 - T + 2 * m), m, m == 0), {("x", m), ("y",)})
        add_reduction(S, acc, st["prev"], T, k & 1, k); st["prev"] = acc
        if T == 0: stamp_in_stream(S, 5)
    S.force(lambda it: it["chain"] in ("sh", "x"))
    a30, k30 = new_acc(); a31, k31 = new_acc()
    for m in range(16):
        S.mfma(mm(a31, Y0 + 4 * m, m, m == 0), {("x", m)})
        S.mfma(mm(a30, Y0 + 4 * m + 2, m, m == 0), set(), room=0)
        for i in (2 * m, 2 * m + 1) + ((32,) if m == 15 else ()):
            S.add(1, f"ds_read_b64_tr_b16 {vr(Y0+2*i,2)}, {aYH} offset:{128*(32-i)}", tag=("hi", i), chain="t")
        for hh in range(2):
            S.add(1, xread(m, hh, 1), tag=("xs", m), chain="t")
        for _ in range(2):
            it = S.pick()
            if it: S.q.remove(it); S.issue(it)
    add_reduction(S, a30, st["prev"], 30, k30 & 1, k30)
    add_reduction(S, a31, a30, 31, k31 & 1, k31)
    for h in range(1, 8):
        p.e(f"s_cmp_eq_u32 {sX}, {h}\ns_cbranch_scc1 L_tail{h}")
    base_hist, base = list(p.hist[:-14]), (copy.deepcopy(S.q), list(S.lds), list(S.when), S.done, S.n, dict(st))
    for h in range(8):
        if h:
            p.cut(); p.e(f"L_tail{h}:"); p.hist = list(base_hist)
            S.q, S.lds, S.when, S.done, S.n = copy.deepcopy(base[0]), list(base[1]), list(base[2]), base[3], base[4]
            st.update(base[5])
        topL, topH = 128 + 124 * h, 1984 - 124 * h
        runs = [[(topL - 64 * i, LOW0, i, "low", slot) for i, slot in (((2, 36),) if h == 0 else ()) + ((1, 32), (0, 33))],
                [(topH - 64 * i, Y0, i, "hi", slot) for i, slot in ((1, 34), (0, 35))]]
        for run in runs:
            prev = None
            for w, arr, i0, kind, slot in run:
                acc, k = new_acc()
                for m in range((w + 63) // 128 + 1):
                    i = i0 + 2 * m
                    tags = {("xs", m)} | ({("low",)} if kind == "low" else {("hi", i), ("hi", i + 1)})
                    S.mfma(mm(acc, arr + 2 * i, m, m == 0), tags)
                add_reduction(S, acc, prev, slot, k & 1, k); prev = acc
        S.q = [it for it in S.q if it["chain"] != "t"]
        S.drain()
        if cfg.stamps:
            stamp(p, "M", 6); stamp_flush(p, 7)
        p.e("s_endpgm")
    p.cut()
    p.e(f"""
L_slow1:
    s_mov_b32 s14, 0
L_slow1b:
    buffer_load_dword {vP}, {aF}, {SWS}, s38 offen sc1
    s_add_u32 s14, s14, 1
    s_waitcnt vmcnt(0)
    v_cmp_ne_u32 vcc, {sTAG}, {vP}
    s_cbranch_vccz L_back1
    s_cmp_lt_u32 s14, {SPIN}
    s_cbranch_scc1 L_slow1b
    s_branch L_back1
L_slow2:
    s_mov_b32 s14, 0
L_slow2b:
    ds_read_b32 {vP2}, v254
    s_add_u32 s14, s14, 1
    s_waitcnt lgkmcnt(0)
    v_cmp_eq_u32 vcc, 0, {vP2}
    s_cbranch_vccz L_back2
    s_cmp_lt_u32 s14, {SPIN*8}
    s_cbranch_scc1 L_slow2b
    s_branch L_back2
    """)
    p.cut()

def stamp_in_stream(S, idx):
    if cfg.stamps:
        S.issue(dict(text=f"s_memrealtime s[{80+2*idx}:{81+2*idx}]\ns_waitcnt lgkmcnt(0)", tag=None, after=None))

def kv_compute(p, KR, VR, SW, G, wait_k, wait_v):
    K, W, KS, VT = 80, 102, 110, 126
    p.e(f"s_waitcnt vmcnt({wait_k})\n.p2align 3")
    for j in range(4):
        for c in range(2):
            src = SW + 2 * c + (j >> 1)
            p.e(f"v_and_b32 v{W+2*j+c}, 0xffff0000, v{src}" if j & 1 else f"v_lshlrev_b32_e64 v{W+2*j+c}, 16, v{src}")
    for i in range(11):
        p.e(f"v_lshlrev_b32_e64 v{K+2*i}, 16, v{KR+i}\nv_and_b32 v{K+2*i+1}, 0xffff0000, v{KR+i}")
    for j in (3, 2, 1, 0):
        for t in range(8):
            k = vr(K + 2 * (t + 3 - j), 2)
            if j == 3: p.e(f"v_pk_mul_f32 {vr(KS+2*t,2)}, {k}, {vr(W+2*j,2)}")
            else: p.e(f"v_pk_fma_f32 {vr(KS+2*t,2)}, {k}, {vr(W+2*j,2)}, {vr(KS+2*t,2)}")
    p.e(f"s_waitcnt vmcnt({wait_v})\n.p2align 3")
    for t in range(8):
        p.e(f"v_lshlrev_b32_e64 v{K+2*t}, 16, v{VR+t}\nv_and_b32 v{K+2*t+1}, 0xffff0000, v{VR+t}")
    for t in range(8):
        p.e(f"v_pk_mul_f32 {vr(KS+2*t,2)}, {vr(KS+2*t,2)}, {vr(K+2*t,2)}")
    for c in range(2):
        for i in range(4):
            p.e(f"v_cvt_pk_bf16_f32 v{G+4*c+i}, v{KS+4*i+c}, v{KS+4*i+2+c}")

def data_wave(p):
    vIn, vSw, vSr, vOut, vH, vH2 = "v200", "v201", "v202", "v203", "v204", "v205"
    GQ, GW, KR, VR, SW, KR2, VR2, SW2, G, RB = 2, 14, 26, 37, 46, 50, 61, 70, 128, 136
    vZd, vT = "v206", "v209"
    p.e("L_data:")
    stamp(p, "D", 0)
    p.e(f"""
    s_load_dwordx2 s[12:13], s[0:1], 8
    s_load_dwordx2 s[16:17], s[0:1], 16
    s_load_dwordx2 s[32:33], s[0:1], 24
    s_load_dwordx2 s[36:37], s[0:1], 104
    s_load_dwordx2 s[24:25], s[0:1], 112
    s_setprio 3
    s_mov_b32 s14, {NB}
    s_mov_b32 s15, 0x20000
    s_mov_b32 s18, {NB}
    s_mov_b32 s19, 0x20000
    s_mov_b32 s26, {NB}
    s_mov_b32 s27, 0x20000
    s_mov_b32 s38, {ROW}
    s_mov_b32 s39, 0x20000
    s_mul_i32 s56, {sW}, {STG}
    s_add_u32 s56, s56, {L_STG}
    """)
    lane_transpose_addrs(p, vIn, vSw, vSr, vOut, "s56")
    p.e(f"""
    s_lshl_b32 s57, {sX}, 5
    s_add_u32 s57, s57, {sR}
    s_lshl_b32 s57, s57, 2
    s_add_u32 s57, s57, {sW}
    s_lshl_b32 s57, s57, 1
    s_mul_i32 s58, s57, {ROW}
    v_and_b32 v210, 31, v1
    v_lshrrev_b32 v211, 5, v1
    v_cmp_gt_u32 vcc, 24, v210
    v_lshlrev_b32 v210, 4, v210
    v_mov_b32 v212, 0x40000000
    v_cndmask_b32 v210, v212, v210, vcc
    v_mul_u32_u24 v212, {ROW}, v211
    v_add_u32 v212, v212, v210
    s_lshl_b32 s59, {sX}, 2
    s_add_u32 s60, s59, {sW}
    s_mul_i32 s61, {sR}, {64*ROW}
    s_lshl_b32 s62, s60, 5
    s_add_u32 s61, s61, s62
    s_add_u32 s62, s61, {4*ROW}
    s_sub_u32 s63, s61, {3*ROW}
    v_add_u32 {vH}, s63, {vIn}
    v_and_b32 v213, 7, v1
    s_lshl_b32 s63, s60, 7
    v_lshl_add_u32 v214, v213, 4, s63
    s_lshr_b32 s64, {sR}, 3
    s_add_u32 s64, s64, s59
    s_and_b32 s65, {sR}, 3
    s_add_u32 s66, s65, 32
    s_mul_i32 s67, s64, {64*ROW}
    s_lshl_b32 s68, s66, 5
    s_add_u32 s67, s67, s68
    s_add_u32 s68, s67, {4*ROW}
    s_sub_u32 s63, s67, {3*ROW}
    v_add_u32 {vH2}, s63, {vIn}
    s_lshl_b32 s63, s66, 7
    v_lshl_add_u32 v215, v213, 4, s63
    s_bfe_u32 s69, {sR}, 0x10002
    s_cmp_eq_u32 {sW}, 0
    s_cselect_b32 s70, s69, 2
    s_waitcnt lgkmcnt(0)
    """)
    for i in range(3):
        p.e(f"buffer_load_dwordx4 {vr(GQ+4*i,4)}, v212, {SQ}, s58 offen offset:{384*i}")
    p.e(f"s_load_dword {sTAG}, s[20:21], 0")
    for i in range(3):
        p.e(f"buffer_load_dwordx4 {vr(GW+4*i,4)}, v210, {SGW}, 0 offen offset:{384*i}")
    p.e(f"global_load_dwordx4 {vr(SW,4)}, v214, s[32:33]")
    load_halo(p, KR, vH, SK)
    load_rows(p, KR + 3, vIn, SK, "s61", "s62")
    load_rows(p, VR, vIn, SV, "s61", "s62")
    p.e(f"""
    v_mov_b32 v132, -1
    v_mov_b32 v133, -1
    v_mov_b32 v134, -1
    v_mov_b32 v135, -1
    s_lshl_b32 s54, {sW}, 10
    s_add_u32 s54, s54, {L_Y}
    v_lshl_add_u32 v216, v1, 4, s54
    """)
    for i in range(9):
        p.e(f"ds_write_b128 v216, v[132:135] offset:{4096*i}")
    p.e(f"""
    v_lshlrev_b32 v217, 4, v1
    v_add_u32 v217, {L_Y + 36*1024}, v217
    ds_write_b128 v217, v[132:135]
    v_mov_b32 {vZd}, 0
    s_mul_i32 s71, s60, {16*UST}
    s_lshl_b32 s72, {sR}, 7
    s_add_u32 s71, s71, s72
    s_add_u32 s71, s71, {WS_UT}
    s_add_u32 s72, s71, {8*UST}
    s_mul_i32 s73, s69, 36
    s_add_u32 s73, s73, s66
    s_mul_i32 s73, s73, {16*UST}
    s_lshl_b32 s74, s64, 7
    s_add_u32 s73, s73, s74
    s_add_u32 s73, s73, {WS_UT}
    s_add_u32 s74, s73, {8*UST}
    """)
    flag_index(p, "s75", 0, sX, sW)
    p.e(f"s_mul_i32 s54, {sR}, {cfg.fs}\ns_add_u32 s75, s75, s54")
    flag_index(p, "s76", "s69", 8, "s65")
    p.e(f"""
    s_mul_i32 s54, s64, {cfg.fs}
    s_add_u32 s76, s76, s54
    s_lshl_b32 s77, s57, 3
    s_add_u32 s77, s77, {WS_G}
    v_lshlrev_b32 v211, 3, v211
    s_mov_b32 s34, 0x05040100
    s_mov_b32 s35, 0x07060302
    s_waitcnt lgkmcnt(0)
    s_barrier
    """)
    make_tag(p)
    p.e(f"v_mov_b32 {vT}, {sTAG}\ns_waitcnt vmcnt(20)")
    stamp(p, "D", 1)
    for i in range(12):
        p.e(f"v_dot2_f32_bf16 v208, v{GQ+i}, v{GW+i}, {'0' if i == 0 else 'v208'}")
    for sh in (1, 2, 4, 8):
        p.e(f"v_add_f32_dpp v208, v208, v208 row_shr:{sh} row_mask:0xf bank_mask:0xf bound_ctrl:0")
    p.e(f"""
    v_add_f32_dpp v208, v208, v208 row_bcast:15 row_mask:0xa bank_mask:0xf
    v_mul_f32 v208, {f32(-math.log2(math.e))}, v208
    v_exp_f32 v208, v208
    v_add_f32 v208, 1.0, v208
    v_rcp_f32 v208, v208
    s_mov_b32 exec_lo, 0x80000000
    s_mov_b32 exec_hi, 0x80000000
    buffer_store_dwordx2 v[208:209], v211, {SWS}, s77 offen sc1
    s_mov_b64 exec, -1
    s_cmp_eq_u32 s70, 2
    s_cbranch_scc1 L_dplain
    s_cmp_eq_u32 s70, 1
    s_cbranch_scc1 L_dx
    """)
    hist = list(p.hist)
    p.e(f"global_load_dwordx4 {vr(SW2,4)}, v215, s[32:33]")
    load_halo(p, KR2, vH2, SK)
    load_rows(p, KR2 + 3, vIn, SK, "s67", "s68")
    load_rows(p, VR2, vIn, SV, "s67", "s68")
    kv_compute(p, KR, VR, SW, G, 8 + 21, 21)
    publish(p, G, RB, vSw, vSr, vOut, "s71", "s72", "sc1")
    kv_compute(p, KR2, VR2, SW2, G, 10, 2)
    p.e("s_branch L_dextra")
    p.cut(); p.e("L_dx:"); p.hist = list(hist)
    load_rows(p, VR2, vIn, SQ, "s67", "s68")
    kv_compute(p, KR, VR, SW, G, 8 + 9, 9)
    publish(p, G, RB, vSw, vSr, vOut, "s71", "s72", "sc1")
    p.e("s_waitcnt vmcnt(2)")
    x_pack(p, VR2, G, "s34", "s35")
    p.e("L_dextra:")
    publish(p, G, RB + 8, vSw, vSr, vOut, "s73", "s74", "sc1")
    p.e("s_waitcnt vmcnt(2)")
    flag_store(p, "s75", vZd, vT, "sc1")
    p.e("s_waitcnt vmcnt(1)")
    flag_store(p, "s76", vZd, vT, "sc1")
    p.e("s_branch L_dpub")
    p.cut(); p.e("L_dplain:"); p.hist = list(hist)
    kv_compute(p, KR, VR, SW, G, 8 + 1, 1)
    stamp(p, "D", 2)
    publish(p, G, RB, vSw, vSr, vOut, "s71", "s72", "sc1")
    p.e("s_waitcnt vmcnt(0)")
    flag_store(p, "s75", vZd, vT, "sc1")
    p.e("L_dpub:")
    stamp(p, "D", 3)
    GG, QQ, YY, OO = 2, 24, 44, 48
    p.e(f"""
    s_setprio 0
    s_mul_i32 s54, {sX}, 124
    s_add_u32 s55, s54, 64
    s_sub_u32 s54, 1920, s54
    s_cmp_ge_u32 {sW}, 2
    s_cselect_b32 s57, s54, s55
    s_and_b32 s54, {sW}, 1
    s_lshl_b32 s54, s54, 6
    s_add_u32 s57, s57, s54              ; first row of this wave's shared tile
    s_lshl_b32 s58, s57, 3
    s_add_u32 s58, s58, {WS_G}
    s_lshl_b32 s59, {sW}, 9
    s_add_u32 s59, s59, {WS_G}
    s_add_u32 s60, s59, 4096
    s_add_u32 s61, s59, 8192
    s_add_u32 s62, s59, 12288
    s_mov_b32 s63, {WS_G}
    v_lshlrev_b32 v210, 3, v1
    s_mov_b32 s64, 0
L_gpoll:
    """)
    for i in range(8):
        p.e(f"buffer_load_dwordx2 {vr(GG+2*i,2)}, v210, {SWS}, s{59+(i>>1)} offen offset:{2048*(i&1)} sc1")
    p.e(f"buffer_load_dwordx2 {vr(GG+16,2)}, v210, {SWS}, s58 offen sc1\nbuffer_load_dwordx2 {vr(GG+18,2)}, v210, {SWS}, s63 offen sc1")
    p.e("s_add_u32 s64, s64, 1\ns_waitcnt vmcnt(0)")
    for i in range(10):
        p.e(f"v_xor_b32 v{GG+2*i+1}, {sTAG}, v{GG+2*i+1}")
    p.e(f"""
    v_or3_b32 v211, v{GG+1}, v{GG+3}, v{GG+5}
    v_or3_b32 v211, v211, v{GG+7}, v{GG+9}
    v_or3_b32 v211, v211, v{GG+11}, v{GG+13}
    v_or3_b32 v211, v211, v{GG+15}, v{GG+17}
    v_or_b32 v211, v211, v{GG+19}
    v_cmp_ne_u32 vcc, 0, v211
    s_cbranch_vccz L_gok
    s_cmp_lt_u32 s64, {SPIN}
    s_cbranch_scc1 L_gpoll
L_gok:
    """)
    stamp(p, "D", 4)
    p.e(f"""
    s_lshl_b32 s54, s2, 2
    s_add_u32 s54, s54, {sW}
    s_cmp_lg_u32 s54, 1
    s_cbranch_scc1 L_noepoch
    v_lshlrev_b32 v211, 6, v1
    s_mov_b32 s64, 0
    s_mov_b32 s59, {WS_G + 4}
    s_mov_b32 s60, {WS_G + 4 + 4096}
    s_mov_b32 s61, {WS_G + 4 + 8192}
    s_mov_b32 s62, {WS_G + 4 + 12288}
L_epoll:
    """)
    for i in range(4):
        p.e(f"buffer_load_dword v{212+i}, v211, {SWS}, s{59+i} offen sc1")
    p.e("s_add_u32 s64, s64, 1\ns_waitcnt vmcnt(0)")
    for i in range(4):
        p.e(f"v_xor_b32 v{212+i}, {sTAG}, v{212+i}")
    p.e(f"""
    v_or3_b32 v212, v212, v213, v214
    v_or_b32 v212, v212, v215
    v_cmp_ne_u32 vcc, 0, v212
    s_cbranch_vccz L_eok
    s_cmp_lt_u32 s64, {SPIN}
    s_cbranch_scc1 L_epoll
L_eok:
    """)
    flag_store(p, "0", vZd, vT, "sc1")
    p.e("L_noepoch:")
    for i in range(10):
        p.e(f"v_sub_f32 v{GG+2*i+1}, 1.0, v{GG+2*i}")
    for i in range(20):
        p.e(f"v_mov_b32 v{QQ+i}, 0")
    p.e(f"""
    s_lshl_b32 s54, {sW}, 7
    s_add_u32 s54, s54, {L_SCR + 2*SCR + 32}
    v_lshl_add_u32 v218, v1, 1, s54
    s_lshl_b32 s54, s57, 1
    s_add_u32 s54, s54, {L_SCR + 2*SCR + 32 + USH}
    v_lshl_add_u32 v219, v1, 1, s54      ; x of the shared pair
    v_lshlrev_b32 v220, 1, v1
    v_add_u32 v220, {L_SCR + 2*SCR + 32 + USH}, v220
    v_mul_u32_u24 v221, {ROW}, v1
    s_lshl_b32 s54, {sR}, 2
    v_add_u32 v221, s54, v221
    s_lshl_b32 s54, {sX}, 2
    s_add_u32 s54, s54, {sW}
    s_and_b32 s55, {sW}, 1
    s_cmp_eq_u32 s55, 0
    s_cselect_b32 s55, 4, 0
    s_cmp_eq_u32 s54, 0
    s_cselect_b32 s55, 0, s55            ; first valid lane of the shared tile
    s_cmp_eq_u32 s54, 29
    s_cselect_b32 s65, 60, 64
    v_cmp_le_u32 vcc, s55, v1
    v_cmp_gt_u32 s[66:67], s65, v1
    s_and_b64 vcc, vcc, s[66:67]
    v_mov_b32 v222, 0x40000000
    v_cndmask_b32 v222, v222, v221, vcc
    s_mul_i32 s59, {sW}, {64*ROW}
    s_lshl_b32 s60, {sX}, 7
    s_add_u32 s59, s59, s60
    s_mul_i32 s60, s57, {ROW}
    s_add_u32 s60, s60, 1024
    s_mov_b32 s61, 1024
    """)
    def tile(name, yaddr, yoff, i, qaddr, qoff, oaddr, soff, post=None, first=False):
        q, g, o = QQ + 2 * i, GG + 2 * i, OO + 2 * (i & 1)
        p.e(f"s_mov_b32 s64, 0\nL_t{name}:\nds_read_b128 {vr(YY,4)}, {yaddr} offset:{yoff}")
        if qaddr:
            p.e(f"ds_read_u16_d16_hi v{q}, {qaddr} offset:{qoff}\nds_read_u16_d16_hi v{q+1}, {qaddr} offset:{qoff+SCR}")
        p.e(f"""
        s_waitcnt lgkmcnt(0)
        v_max3_u32 v211, v{YY}, v{YY+1}, v{YY+2}
        v_max_u32 v211, v211, v{YY+3}
        v_cmp_eq_u32 vcc, -1, v211
        s_cbranch_vccz L_u{name}
        s_sleep 1
        s_add_u32 s64, s64, 1
        s_cmp_lt_u32 s64, {SPIN*4}
        s_cbranch_scc1 L_t{name}
L_u{name}:
        """)
        if first: stamp(p, "D", 5)
        p.e(f"""
        v_pk_mul_f32 {vr(q,2)}, {vr(q,2)}, {vr(g,2)} op_sel_hi:[1,0]
        v_pk_mul_f32 {vr(o,2)}, {vr(YY+2,2)}, {vr(g,2)} op_sel:[0,1]
        v_pk_fma_f32 {vr(o,2)}, {vr(q,2)}, {vr(YY,2)}, {vr(o,2)}
        v_cvt_pk_bf16_f32 v{o}, v{o}, v{o+1}
        s_waitcnt vmcnt({cfg.st_inflight})
        buffer_store_dword v{o}, {oaddr}, {SOUT}, {soff} offen
        """)
        if post: post()
    def rest_q():
        for i in range(1, 8):
            p.e(f"ds_read_u16_d16_hi v{QQ+2*i}, v218 offset:{512*i}\nds_read_u16_d16_hi v{QQ+2*i+1}, v218 offset:{512*i+SCR}")
    for i in range(8):
        tile(f"o{i}", "v216", 4096 * i, i, "v218" if i == 0 else None, 0, "v221", "s59", post=rest_q if i == 0 else None, first=i == 0)
        if i < 7: p.e(f"s_add_u32 s59, s59, {256*ROW}")
    p.e("s_cmp_lg_u32 s54, 2\ns_cbranch_scc1 L_nol0")
    tile("z", "v217", 0, 9, "v220", 0, "v221", "s61")
    p.e("L_nol0:")
    tile("s", "v216", 4096 * 8, 8, "v219", 0, "v222", "s60")
    if cfg.stamps:
        p.e("s_waitcnt vmcnt(0)")
        stamp(p, "D", 6); stamp_flush(p, 7, "D")

def build():
    p = Prog()
    prologue(p)
    hist = list(p.hist)
    matrix_wave(p)
    p.hist = hist
    data_wave(p)
    p.e("L_end:\ns_endpgm")
    head = "".join(l for l in open("cdna_kernels/" + KNAME[:-7] + ".s.ref") if l.startswith(";") and "@launch" not in l and "Override" not in l and "grid=ceil" not in l)
    out = head + f"; @launch grid=(256,1,1) block=(512,1,1) lds={LDS_BYTES}\n"
    out += f""".amdgcn_target "amdgcn-amd-amdhsa--gfx950"
.text
.globl {KNAME}
.p2align 8
.type {KNAME},@function
{KNAME}:
"""
    out += p.text()
    out += f""".section .rodata,"a"
.p2align 6
.amdhsa_kernel {KNAME}
  .amdhsa_next_free_vgpr 256
  .amdhsa_next_free_sgpr 96
  .amdhsa_accum_offset 256
  .amdhsa_group_segment_fixed_size 0
  .amdhsa_kernarg_size 136
  .amdhsa_user_sgpr_count 2
  .amdhsa_user_sgpr_kernarg_segment_ptr 1
  .amdhsa_system_sgpr_workgroup_id_x 1
.end_amdhsa_kernel
"""
    return out, p

if __name__ == "__main__":
    dst = sys.argv[1]
    for kv in sys.argv[2:]:
        k, v = kv.split("=")
        old = getattr(cfg, k)
        setattr(cfg, k, (v == "1") if isinstance(old, bool) else type(old)(v))
    text, p = build()
    open(dst, "w").write(text)
    print("wrote", dst, "instructions", sum(1 for i in p.ins if i.states), "nop states", p.nops, "lds", LDS_BYTES)
```

```python
import sys, copy, struct, math
from asmlib import Prog, Ins, sizes

KNAME = "gated_mix__ssm_conv_h3__ssm_conv_s4d__prompt_kernel"
class Cfg:
    stamps = False
    in_nt = ""
    fs = 64
    poll_at = 14
    check_at = 20
    land_at = 27
    st_inflight = 1
    ack_pos = 40
    prefetch_code = True
    clk = False
    probe = ""
cfg = Cfg()

ROW = 1152
NB = 2048 * ROW
WS_G, WS_FLAG, WS_UT, UST = 0x1000, 0x8000, 0x80000, 4224
WS_STAMP = 0x600000
WS_END = WS_UT + 1152 * UST
L_SCR, SCR = 0, 8704
USH = 4128
L_K, KST, KPAD = 34816, 4480, 384
L_Y = L_K + 8 * KST
L_STG, STG = L_Y + 37 * 1024, 2176
L_FLAG = L_STG + 4 * STG
LDS_BYTES = L_FLAG + 64
SPIN = 0x8000
def f32(x): return "0x%08x" % struct.unpack("<I", struct.pack("<f", x))[0]
LOG2E, INV2PI = f32(math.log2(math.e)), f32(1 / (2 * math.pi))

sWAVE, sX, sR, sW, sTAG = "s3", "s4", "s5", "s6", "s7"
SQ, SK, SV, SWS, SOUT, SSK, SGW = "s[8:11]", "s[12:15]", "s[16:19]", "s[20:23]", "s[24:27]", "s[28:31]", "s[36:39]"

def vr(a, n=1): return f"v{a}" if n == 1 else f"v[{a}:{a+n-1}]"

def timer(): return "s_memtime" if cfg.clk else "s_memrealtime"
def stamp(p, role, idx):
    if cfg.stamps:
        p.e(f"{timer()} s[{80+2*idx}:{81+2*idx}]\ns_waitcnt lgkmcnt(0)")
probe_id = [0]
def stamp_flush(p, n, role="M"):
    if not cfg.stamps: return
    if cfg.probe:
        if cfg.probe[0] == role:
            i = int(cfg.probe[1]); probe_id[0] += 1
            p.e(f"s_add_u32 s94, s{80+2*i}, 4000\nL_probe{probe_id[0]}:\ns_sleep 2\ns_memrealtime s[54:55]\ns_waitcnt lgkmcnt(0)\n"
                f"s_sub_u32 s54, s54, s94\ns_cmp_lt_i32 s54, 0\ns_cbranch_scc1 L_probe{probe_id[0]}")
        return
    p.e(f"s_lshl_b32 s54, s2, 3\ns_add_u32 s54, s54, {sWAVE}\ns_lshl_b32 s54, s54, 6\ns_add_u32 s54, s54, {WS_STAMP}")
    p.e("v_mov_b32 v1, 0")
    for i in range(n):
        p.e(f"v_mov_b32 v2, s{80+2*i}\nbuffer_store_dword v2, v1, {SWS}, s54 offen offset:{4*i}")

def flag_index(p, dst, kind, strip, quarter, tmp="s55"):
    p.e(f"s_mul_i32 {dst}, {kind}, 9\ns_add_u32 {dst}, {dst}, {strip}\ns_lshl_b32 {dst}, {dst}, 2\n"
        f"s_add_u32 {dst}, {dst}, {quarter}\ns_mul_i32 {dst}, {dst}, {32*cfg.fs}\ns_add_u32 {dst}, {dst}, {WS_FLAG}")

def lane_transpose_addrs(p, vIn, vSw, vSr, vOut, stg_sgpr, lane="v1", t="v232", t2="v233"):
    p.e(f"""
    v_lshrrev_b32 {t}, 3, {lane}
    v_and_b32 {t2}, 7, {lane}
    v_mul_u32_u24 {vIn}, {8*ROW}, {t}
    v_lshl_add_u32 {vIn}, {t2}, 2, {vIn}
    v_mul_u32_u24 {vSw}, 272, {t2}
    v_lshl_add_u32 {vSw}, {t}, 4, {vSw}
    v_add_u32 {vSw}, {stg_sgpr}, {vSw}
    v_mul_u32_u24 {vOut}, {UST}, {t}
    v_lshl_add_u32 {vOut}, {t2}, 4, {vOut}
    v_lshrrev_b32 {t}, 4, {lane}
    v_mul_u32_u24 {vSr}, 272, {t}
    v_and_b32 {t2}, 15, {lane}
    v_lshl_add_u32 {vSr}, {t2}, 4, {vSr}
    v_add_u32 {vSr}, {stg_sgpr}, {vSr}
    """)

def load_rows(p, dst, vIn, srd, s0, s4):
    for i in range(8):
        p.e(f"buffer_load_dword v{dst+i}, {vIn}, {srd}, {s0 if i < 4 else s4} offen offset:{(i & 3)*ROW} {cfg.in_nt}")
def load_halo(p, dst, vH, srd):
    for i in range(3):
        p.e(f"buffer_load_dword v{dst+i}, {vH}, {srd}, 0 offen offset:{i*ROW} {cfg.in_nt}")

def publish(p, G, RB, vSw, vSr, vOut, sA, sB, flavor):
    p.e(f"""
    ds_write_b128 {vSw}, {vr(G,4)}
    ds_write_b128 {vSw}, {vr(G+4,4)} offset:128
    ds_read_b128 {vr(RB,4)}, {vSr}
    ds_read_b128 {vr(RB+4,4)}, {vSr} offset:{4*272}
    s_waitcnt lgkmcnt(1)
    buffer_store_dwordx4 {vr(RB,4)}, {vOut}, {SWS}, {sA} offen {flavor}
    s_waitcnt lgkmcnt(0)
    buffer_store_dwordx4 {vr(RB+4,4)}, {vOut}, {SWS}, {sB} offen {flavor}
    """)

def x_pack(p, raw, G, sLo, sHi):
    for i in range(4):
        p.e(f"v_perm_b32 v{G+i}, v{raw+2*i+1}, v{raw+2*i}, {sLo}")
    for i in range(4):
        p.e(f"v_perm_b32 v{G+4+i}, v{raw+2*i+1}, v{raw+2*i}, {sHi}")

def flag_store(p, sOff, vZero, vTag, flavor):
    p.e(f"s_mov_b64 exec, 1\nbuffer_store_dword {vTag}, {vZero}, {SWS}, {sOff} offen {flavor}\ns_mov_b64 exec, -1")

def prologue(p):
    p.e(f"""
    s_cmp_ge_u32 s2, 256
    s_cbranch_scc1 L_end
    s_load_dwordx2 s[8:9], s[0:1], 0
    s_load_dwordx2 s[20:21], s[0:1], 128
    v_lshrrev_b32 v2, 6, v0
    v_and_b32 v1, 63, v0
    v_readfirstlane_b32 {sWAVE}, v2
    s_and_b32 {sX}, s2, 7
    s_lshr_b32 {sR}, s2, 3
    s_mov_b32 s10, {NB}
    s_mov_b32 s11, 0x20000
    s_mov_b32 s22, {WS_STAMP + 0x20000 if cfg.stamps else WS_END}
    s_mov_b32 s23, 0x20000
    s_and_b32 {sW}, {sWAVE}, 3
    s_cmp_ge_u32 {sWAVE}, 4
    s_cbranch_scc1 L_data
    """)

def make_tag(p):
    p.e(f"s_mul_i32 {sTAG}, {sTAG}, 0x0019660d\ns_add_u32 {sTAG}, {sTAG}, 0x3c6ef35f")

Y0, X0, ACC0, NACC, LOW0, STG0, T0 = 2, 68, 132, 8, 164, 200, 216
aY, aX, aYH, aYL, aYw, aUw, aG, aF, vP, vZ, vTagM = ("v%d" % i for i in range(222, 233))
vP2 = "v237"

def cmul(d, a, w):
    return [f"v_pk_mul_f32 {vr(d,2)}, {vr(a,2)}, {vr(w,2)}",
            f"v_pk_mul_f32 {vr(d+2,2)}, {vr(a,2)}, {vr(w+2,2)}",
            f"v_pk_fma_f32 {vr(d,2)}, {vr(a+2,2)}, {vr(w+2,2)}, {vr(d,2)} neg_lo:[1,0,0] neg_hi:[1,0,0]",
            f"v_pk_fma_f32 {vr(d+2,2)}, {vr(a+2,2)}, {vr(w,2)}, {vr(d+2,2)}"]

def matrix_wave(p):
    vIn, vSw, vSr, vOut = "v234", "v235", "v236", "v238"
    RAW, PAR = 2, 10
    stamp(p, "M", 0)
    p.e(f"""
    s_load_dwordx2 s[28:29], s[0:1], 32
    s_load_dwordx8 s[40:47], s[0:1], 56
    s_load_dwordx4 s[48:51], s[0:1], 88
    s_load_dwordx2 s[52:53], s[0:1], 40
    s_mov_b32 s30, {NB}
    s_mov_b32 s31, 0x20000
    s_mul_i32 s56, {sW}, {SCR}
    """)
    lane_transpose_addrs(p, vIn, vSw, vSr, vOut, "s56")
    p.e(f"""
    s_lshr_b32 s57, {sR}, 3
    s_lshl_b32 s58, {sX}, 2
    s_add_u32 s58, s58, s57
    s_and_b32 s59, {sR}, 7               ; strip
    s_lshl_b32 s60, s59, 2
    s_add_u32 s60, s60, {sW}
    s_mul_i32 s61, s58, {64*ROW}
    s_lshl_b32 s62, s60, 5
    s_add_u32 s61, s61, s62
    s_add_u32 s62, s61, {4*ROW}
    s_and_b32 s63, {sW}, 1
    s_lshl_b32 s64, {sR}, 1
    s_add_u32 s64, s64, s63
    s_lshl_b32 s65, {sX}, 6
    s_add_u32 s65, s65, s64
    s_add_u32 s66, s64, 512              ; shared channel
    s_cmp_ge_u32 {sW}, 2
    s_cselect_b32 s67, s65, s66
    s_cselect_b32 s68, s66, s65
    s_cselect_b32 s69, 0, 6
    s_cselect_b32 s70, 2, 0
    s_add_u32 s69, s69, {sW}
    s_add_u32 s70, s70, {sW}
    s_mul_i32 s69, s69, {KST}
    s_mul_i32 s70, s70, {KST}
    s_add_u32 s69, s69, {L_K}
    s_add_u32 s70, s70, {L_K}
    s_lshl_b32 s71, s67, 8
    v_lshl_add_u32 v239, v1, 2, s71
    s_lshr_b32 s72, s67, 1
    s_lshl_b32 s72, s72, 2
    s_lshr_b32 s73, s68, 1
    s_lshl_b32 s73, s73, 2
    s_lshl_b32 s74, s68, 12
    s_waitcnt lgkmcnt(0)
    """)
    load_rows(p, RAW, vIn, SQ, "s61", "s62")
    p.e(f"""
    s_load_dword {sTAG}, s[20:21], 0
    s_load_dword s75, s[48:49], s72
    s_load_dword s76, s[50:51], s72
    s_load_dword s77, s[52:53], s73
    s_load_dword s78, s[28:29], s74
    global_load_dword v{PAR}, v239, s[40:41]
    global_load_dword v{PAR+1}, v239, s[42:43]
    global_load_dword v{PAR+2}, v239, s[44:45]
    global_load_dword v{PAR+3}, v239, s[46:47]
    """)
    npf = 0
    if cfg.prefetch_code:
        p.e(f"""
    s_getpc_b64 s[54:55]
L_pc:
    v_lshlrev_b32 v240, 7, v0
    v_min_u32 v240, L_end-L_pc, v240
    v_mov_b32 v241, s55
    v_add_co_u32 v240, vcc, s54, v240
    v_addc_co_u32 v241, vcc, 0, v241, vcc
    global_load_dword v242, v[240:241], off
    """)
        npf = 1
    p.e(f"""
    v_mov_b32 {vZ}, 0
    v_mov_b32 v14, 0
    v_mov_b32 v15, 0
    v_lshlrev_b32 v16, 3, v1
    v_add_u32 v17, s69, v16
    v_add_u32 v18, s70, v16
    ds_write_b64 v17, v[14:15]
    ds_write_b64 v18, v[14:15]
    s_lshl_b32 s54, {sW}, 2
    s_add_u32 s54, s54, {L_FLAG}
    v_mov_b32 v19, s54
    ds_write_b32 v19, v14
    v_add_u32 v243, s56, v16
    v_lshrrev_b32 v20, 4, v1             ; lane>>4
    v_bfe_u32 v21, v1, 2, 2              ; (lane>>2)&3
    v_and_b32 v22, 3, v1
    v_and_b32 v23, 15, v1
    v_lshlrev_b32 v24, 5, v20
    v_lshl_add_u32 v24, v21, 3, v24      ; 32*qq + 8*e
    v_lshl_add_u32 {aX}, v22, 3, v24
    s_add_u32 s54, s56, 8
    v_add_u32 {aX}, s54, {aX}
    v_lshlrev_b32 v25, 5, v22
    v_sub_u32 v25, v25, v24              ; 32*c - 32*qq - 8*e
    s_mul_i32 s54, {sW}, {KST}
    s_add_u32 s54, s54, {L_K + KPAD + 24 - 128}
    v_add_u32 {aY}, s54, v25
    s_mul_i32 s55, {sX}, 248
    s_add_u32 s54, s54, {4*KST}
    s_sub_u32 s79, s54, s55
    v_add_u32 {aYH}, s79, v25
    s_add_u32 s79, s54, s55
    s_sub_u32 s79, s79, {2*(64*17 - 128) - 128}
    v_add_u32 {aYL}, s79, v25
    s_lshl_b32 s54, {sW}, 2
    s_add_u32 s54, s54, {L_Y}
    v_lshl_add_u32 {aYw}, v1, 4, s54
    v_lshlrev_b32 {aG}, 4, v1
    s_add_u32 s54, s56, 32
    v_add_u32 {aUw}, s54, {aG}
    v_and_b32 {aF}, 31, v1
    v_mul_u32_u24 {aF}, {cfg.fs}, {aF}
    v_lshlrev_b32 v26, 4, v20
    v_add_u32 v26, s56, v26
    v_mov_b32 v31, 544
    v_mad_u32_u24 v244, v23, v31, v26
    v_lshl_add_u32 v27, v21, 1, v22
    v_mad_u32_u24 v245, v27, v31, v26
    v_lshrrev_b32 v28, 1, v21
    v_add_u32 v27, v27, v28
    v_mad_u32_u24 v246, v27, v31, v26
    v_mad_u32_u24 v27, v21, 3, v22
    v_mad_u32_u24 v247, v27, v31, v26
    s_add_u32 s54, s69, {KPAD}
    v_lshl_add_u32 v27, v23, 5, s54      ; K + 32*j
    v_lshl_add_u32 v248, v20, 3, v27
    v_lshrrev_b32 v28, 1, v20
    v_and_b32 v29, 1, v20
    v_lshl_add_u32 v249, v28, 9, v27
    v_lshl_add_u32 v249, v29, 4, v249
    v_lshl_add_u32 v250, v20, 9, v27
    s_mov_b32 s32, 0x05040100
    s_mov_b32 s33, 0x07060302
    s_add_u32 s34, s60, 36
    s_mul_i32 s34, s34, {16*UST}
    s_lshl_b32 s35, s58, 7
    s_add_u32 s34, s34, s35
    s_add_u32 s34, s34, {WS_UT}
    s_add_u32 s35, s34, {8*UST}
    """)
    flag_index(p, "s36", 1, "s59", sW)
    p.e(f"s_mul_i32 s54, s58, {cfg.fs}\ns_add_u32 s36, s36, s54\ns_lshr_b32 s39, {sW}, 1")
    flag_index(p, "s37", "s39", sX, "s57")
    flag_index(p, "s38", "s39", 8, "s57")
    p.e(f"""
    s_mul_i32 s39, s39, 576
    s_add_u32 s12, s39, s65
    s_add_u32 s13, s39, s66
    s_mul_i32 s12, s12, {UST}
    s_mul_i32 s13, s13, {UST}
    s_add_u32 s12, s12, {WS_UT}
    s_add_u32 s13, s13, {WS_UT}
    s_lshl_b32 s63, s63, 4
    s_waitcnt lgkmcnt(0)
    s_barrier
    """)
    make_tag(p)
    p.e(f"""
    s_lshr_b32 s75, s75, s63
    s_lshr_b32 s76, s76, s63
    s_lshr_b32 s77, s77, s63
    s_lshl_b32 s75, s75, 16
    s_lshl_b32 s76, s76, 16
    s_lshl_b32 s77, s77, 16
    s_lshl_b32 s78, s78, 16
    v_mov_b32 {vTagM}, {sTAG}
    v_mov_b32 v30, s75
    v_mul_f32 v30, {LOG2E}, v30
    v_exp_f32 v30, v30
    v_mov_b32 v251, s77
    v_add_f32 v251, s78, v251
    v_cvt_pk_bf16_f32 v251, v251, v251
    v_cvt_pk_bf16_f32 v30, v30, v30
    v_lshlrev_b32 v30, 16, v30
    v_mov_b32 v252, 0
    v_writelane_b32 v252, s76, 0
    s_add_u32 s54, s70, {KPAD}
    s_mov_b32 m0, s54
    v_mov_b32 v253, s54
    s_waitcnt vmcnt({4+npf})
    """)
    stamp(p, "M", 1)
    x_pack(p, RAW, 32, "s32", "s33")
    publish(p, 32, 40, vSw, vSr, vOut, "s34", "s35", "sc1")
    for i in range(4):
        p.e(f"buffer_load_dwordx4 {aG}, {SSK}, s74 offen offset:{1024*i} {cfg.in_nt} lds")
    A2, FR, C2, E1, E2, E4, E8, E16, E256 = 48, 50, 52, 56, 60, 64, 68, 72, 76
    TMP = 80
    p.e(f"""
    s_waitcnt vmcnt({6+npf})
    v_lshlrev_b32 v{TMP}, 16, v{PAR}
    v_and_b32 v{TMP+1}, 0xffff0000, v{PAR}
    v_mul_f32 v{TMP}, {LOG2E}, v{TMP}
    v_mul_f32 v{TMP+1}, {LOG2E}, v{TMP+1}
    v_exp_f32 v{TMP}, v{TMP}
    v_exp_f32 v{TMP+1}, v{TMP+1}
    v_lshlrev_b32 v{FR}, 16, v{PAR+1}
    v_and_b32 v{FR+1}, 0xffff0000, v{PAR+1}
    v_cvt_pk_bf16_f32 v{TMP}, v{TMP}, v{TMP+1}
    v_mul_f32 v{FR}, v30, v{FR}
    v_mul_f32 v{FR+1}, v30, v{FR+1}
    v_and_b32 v{TMP+1}, 0xffff0000, v{TMP}
    v_lshlrev_b32 v{TMP}, 16, v{TMP}
    v_mul_f32 v{FR}, {INV2PI}, v{FR}
    v_mul_f32 v{FR+1}, {INV2PI}, v{FR+1}
    v_mul_f32 v{A2}, v30, v{TMP}
    v_mul_f32 v{A2+1}, v30, v{TMP+1}
    v_mul_f32 v{A2}, {f32(-math.log2(math.e))}, v{A2}
    v_mul_f32 v{A2+1}, {f32(-math.log2(math.e))}, v{A2+1}
    v_add_f32 v31, v30, v30
    v_lshlrev_b32 v{C2}, 16, v{PAR+2}
    v_and_b32 v{C2+1}, 0xffff0000, v{PAR+2}
    v_lshlrev_b32 v{C2+2}, 16, v{PAR+3}
    v_and_b32 v{C2+3}, 0xffff0000, v{PAR+3}
    """)
    for i in range(4):
        p.e(f"v_mul_f32 v{C2+i}, v31, v{C2+i}")
    for E, pos, sgn in ((E16, 16.0, -1), (E1, 1.0, 1), (E256, 256.0, 1)):
        for j in range(2):
            p.e(f"v_mul_f32 v{TMP+j}, {f32(pos)}, v{A2+j}\nv_mul_f32 v{TMP+2+j}, {f32(sgn*pos)}, v{FR+j}")
        for j in range(2):
            p.e(f"v_exp_f32 v{TMP+j}, v{TMP+j}\nv_fract_f32 v{TMP+2+j}, v{TMP+2+j}")
        for j in range(2):
            p.e(f"v_cos_f32 v{E+j}, v{TMP+2+j}\nv_sin_f32 v{E+2+j}, v{TMP+2+j}")
        p.e(f"v_pk_mul_f32 {vr(E,2)}, {vr(E,2)}, {vr(TMP,2)}\nv_pk_mul_f32 {vr(E+2,2)}, {vr(E+2,2)}, {vr(TMP,2)}")
    p.e(".p2align 3")
    CH = [84, 88]
    S = [C2] + [92 + 4 * i for i in range(7)]
    PK = [120, 122]
    FB, FA, DK = 128, 160, 192
    npos = [0]
    side = []
    def put(src, row):
        k = PK[npos[0] & 1]
        p.e(f"v_cvt_pk_bf16_f32 v{k}, v{src}, v{src+1}\nv_cvt_pk_bf16_f32 v{k+1}, v{src+2}, v{src+3}\n"
            f"ds_write_b64 v243, {vr(k,2)} offset:{544*row}")
        npos[0] += 1
        if npos[0] == cfg.ack_pos:
            p.e("s_waitcnt vmcnt(4)")
            stamp(p, "M", 2)
            flag_store(p, "s36", vZ, vTagM, "sc1")
            p.e(".p2align 3")
        if side: p.e(side.pop(0))
    def chain(start, mult, n, row0):
        cur = start
        for t in range(n):
            if t + 1 < n:
                nxt = CH[t & 1]
                p.e("\n".join(cmul(nxt, cur, mult)))
            put(cur, row0 + t)
            if t + 1 < n: cur = nxt
    def read_frags(dst, addr):
        for s in range(8):
            p.e(f"ds_read_b128 {vr(dst+4*s,4)}, {addr} offset:{64*s}")
    def mfmas(tile):
        out = []
        for s in range(8):
            c = "0" if s == 0 else vr(DK + 4 * tile, 4)
            out.append(f"v_mfma_f32_16x16x32_bf16 {vr(DK+4*tile,4)}, {vr(FA+4*s,4)}, {vr(FB+4*s,4)}, {c}")
        return out
    p.e(f"v_mov_b32_e64 v{PK[0]}, 0\nv_mov_b32 v{PK[1]}, 0x3f803f80\nv_mov_b32_e64 v{PK[1]+1}, 0\nds_write_b64 v243, {vr(PK[1],2)}")
    chain(E16, E16, 15, 1)
    read_frags(FB, "v244")
    for d, s in ((E2, E1), (E4, E2), (E8, E4)):
        p.e("\n".join(cmul(d, s, s)))
    chain(C2, E1, 16, 0)
    read_frags(FA, "v244")
    for k in range(1, 8):
        p.e("\n".join(cmul(S[k], S[k-1], E256)))
    p.e("s_waitcnt lgkmcnt(0)\ns_nop 0")
    side += mfmas(0)
    chain(S[1], E2, 9, 0)
    assert not side
    read_frags(FA, "v245")
    chain(S[2], E4, 2, 0)
    cur = CH[0]
    p.e("s_waitcnt lgkmcnt(2)\ns_nop 0")
    side += mfmas(1)
    p.e("\n".join(cmul(124, cur, E4)))
    chain(124, E4, 3, 2)
    chain(S[3], E4, 5, 5)
    assert not side
    read_frags(FA, "v246")
    chain(S[4], E8, 3, 0)
    p.e("s_waitcnt lgkmcnt(3)\ns_nop 0")
    side += mfmas(2)
    for u in range(1, 4):
        chain(S[4+u], E8, 3, 3 * u)
    assert not side
    read_frags(FA, "v247")
    O = 84
    D0, D1, D2, D3 = DK, DK + 4, DK + 8, DK + 12
    p.e(f"""
    v_add_f32 v{D0}, v252, v{D0}
    v_cvt_pk_bf16_f32 v{O}, v{D0}, v{D0+1}
    v_cvt_pk_bf16_f32 v{O+1}, v{D0+2}, v{D0+3}
    v_cvt_pk_bf16_f32 v{O+2}, v{D1}, v{D1}
    v_cvt_pk_bf16_f32 v{O+3}, v{D1+1}, v{D1+2}
    v_cvt_pk_bf16_f32 v{O+4}, v{D2}, v{D2}
    v_cvt_pk_bf16_f32 v{O+5}, v{D2}, v{D2+1}
    v_cvt_pk_bf16_f32 v{O+6}, v{D2+1}, v{D2+1}
    v_cvt_pk_bf16_f32 v{O+7}, v{D2+2}, v{D2+2}
    s_waitcnt lgkmcnt(0)
    """)
    m3 = mfmas(3)
    p.e("\n".join(m3[:2]))
    p.e(f"ds_write_b64 v248, {vr(O,2)}\n{m3[2]}\nds_write_b64 v248, {vr(O+2,2)} offset:512\n{m3[3]}\n"
        f"ds_write_b128 v249, {vr(O+4,4)} offset:1024\n{m3[4]}\n"
        f"ds_write_b64 v243, v[14:15]\n{m3[5]}\nds_write_b64 v243, v[14:15] offset:{USH}")
    p.e("\n".join(m3[6:]))
    p.e(f"s_waitcnt vmcnt(1)\nds_write_b16 v253, v251")
    for i, (a, b) in enumerate(((0, 0), (0, 0), (0, 1), (1, 1), (1, 1), (1, 1), (2, 2), (2, 2))):
        p.e(f"v_cvt_pk_bf16_f32 v{O+8+i}, v{D3+a}, v{D3+b}")
    p.e(f"""
    ds_write_b128 v250, {vr(O+8,4)} offset:2048
    ds_write_b128 v250, {vr(O+12,4)} offset:2064
    v_mov_b32 v20, 1
    ds_write_b32 v19, v20
    v_xor_b32 v254, 8, v19
    """)
    stamp(p, "M", 3)
    p.e(f"buffer_load_dword {vP}, {aF}, {SWS}, s37 offen sc1")
    for i in range(32, -1, -1):
        p.e(f"ds_read_b64_tr_b16 {vr(Y0+2*i,2)}, {aY} offset:{128*(32-i)}")
    p.e(f"""
    s_mov_b32 s14, 0
L_mpoll:
    s_waitcnt vmcnt(0)
    v_cmp_ne_u32 vcc, {sTAG}, {vP}
    s_cbranch_vccz L_mgo
    buffer_load_dword {vP}, {aF}, {SWS}, s37 offen sc1
    s_add_u32 s14, s14, 1
    s_cmp_lt_u32 s14, {SPIN}
    s_cbranch_scc1 L_mpoll
L_mgo:
    """)
    for i in range(4):
        p.e(f"buffer_load_dwordx4 {vr(STG0+4*i,4)}, {aG}, {SWS}, s12 offen offset:{1024*i} sc1")
    stamp(p, "M", 4)
    p.e("s_setprio 2")
    conv(p)

class Sched:
    def __init__(self, p):
        self.p = p
        self.lds = []
        self.done = 0
        self.when = []
        self.n = 0
        self.q = []
        self.seq = 0
        self.acc_busy = {}
    def add(self, prio, text, tag=None, nb=0, chain=None, after=None):
        self.q.append(dict(prio=prio, seq=self.seq, text=text, tag=tag, nb=nb, chain=chain, after=after)); self.seq += 1
    def issue(self, it):
        for line in it["text"].split("\n"):
            if line.startswith("ds_"):
                self.lds.append(it["tag"]); self.when.append(self.n)
            if line.startswith("s_waitcnt") and "lgkmcnt(0)" in line: self.done = len(self.lds)
            self.p.e(line)
        if it["after"]: it["after"]()
    def pick(self):
        seen = set()
        for it in sorted(self.q, key=lambda d: (d["prio"], d["seq"])):
            c = it["chain"]
            if c is not None:
                if c in seen: continue
                seen.add(c)
            if it["nb"] > self.n: continue
            if self.p.short(Ins(it["text"].split("\n")[0])) > 0: continue
            return it
        return None
    def force(self, pred):
        while True:
            its = [it for it in self.q if pred(it)]
            if not its: return
            first = min(its, key=lambda d: d["seq"])
            pre = [it for it in self.q if it["chain"] is not None and it["chain"] == first["chain"] and it["seq"] < first["seq"]]
            it = min(pre, key=lambda d: d["seq"]) if pre else first
            self.q.remove(it); self.issue(it)
    def wait_for(self, tags):
        self.force(lambda it: it["tag"] in tags)
        idx = max([i for i, t in enumerate(self.lds) if t in tags], default=-1)
        if idx < self.done: return 0
        k = idx + 1
        while k < len(self.lds) and self.n - self.when[k] >= 8: k += 1
        self.p.e(f"s_waitcnt lgkmcnt({min(15, len(self.lds)-k)})")
        self.done = max(k, len(self.lds) - 15)
        return 1
    def mfma(self, text, tags, room=2):
        used = self.wait_for(tags)
        self.p.e(text); self.n += 1
        while room > 0:
            it = self.pick()
            if it is None: break
            self.q.remove(it); self.issue(it)
            room -= len(it["text"].split("\n"))
    def drain(self):
        while self.q:
            it = self.pick()
            if it is None:
                it = min(self.q, key=lambda d: d["seq"])
            self.q.remove(it); self.issue(it)

def add_reduction(S, acc, prev, slot, par, key):
    t2, t1, y = T0 + par, T0 + 2 + par, T0 + 4 + par
    t2p, t1p = T0 + 1 - par, T0 + 3 - par
    ror = "wave_ror:1 row_mask:0x1 bank_mask:0x1"
    shr = "wave_shr:1 row_mask:0xf bank_mask:0xf" + (" bound_ctrl:0" if prev is None else "")
    ops = []
    if prev is not None:
        ops += [f"v_add_f32_dpp v{t2}, v{prev+3}, v{acc+2} {ror}",
                f"v_add_f32_dpp v{t1}, v{t2p}, v{acc+1} {ror}",
                f"v_add_f32_dpp v{y}, v{t1p}, v{acc} {ror}"]
    ops += [f"v_add_f32_dpp v{t2}, v{acc+3}, v{acc+2} {shr}",
            f"v_add_f32_dpp v{t1}, v{t2}, v{acc+1} {shr}",
            f"v_add_f32_dpp v{y}, v{t1}, v{acc} {shr}",
            f"ds_write_b32 {aYw}, v{y} offset:{1024*slot}"]
    for o in ops:
        S.add(2, o, tag=("red", key), chain="red")

def conv(p):
    S = Sched(p)
    def xread(m, hh, sh):
        return f"ds_read_b64_tr_b16 {vr(X0+4*m+2*hh,2)}, {aX} offset:{256*m+128*hh+(USH if sh else 0)}"
    S.lds = [("y",)]; S.when = [-99]
    p.e("s_waitcnt vmcnt(3)")
    S.issue(dict(text=f"ds_write_b128 {aUw}, {vr(STG0,4)}", tag=None, after=None))
    for m in range(2):
        for hh in range(2):
            S.issue(dict(text=xread(m, hh, 0), tag=("x", m), after=None))
    for i in range(1, 4):
        S.issue(dict(text=f"s_waitcnt vmcnt({3-i})\nds_write_b128 {aUw}, {vr(STG0+4*i,4)} offset:{1024*i}", tag=None, after=None))
    first = lambda T: sum(t // 2 + 1 for t in range(T))
    for m in range(2, 16):
        for hh in range(2):
            S.add(1, xread(m, hh, 0), tag=("x", m), nb=max(0, first(2 * m) + m - 10), chain="x")
    S.add(0, f"buffer_load_dword {vP}, {aF}, {SWS}, s38 offen sc1", nb=first(cfg.poll_at), chain="sh")
    S.add(0, f"ds_read_b32 {vP2}, v254", nb=first(cfg.check_at) - 8, chain="sh")
    S.add(0, f"s_waitcnt vmcnt(0) lgkmcnt(0)\nv_cmp_ne_u32 vcc, {sTAG}, {vP}", nb=first(cfg.check_at), chain="sh")
    S.add(0, f"s_cbranch_vccnz L_slow1\nL_back1:\nv_cmp_eq_u32 vcc, 0, {vP2}", chain="sh")
    S.add(0, f"s_cbranch_vccnz L_slow2\nL_back2:", chain="sh")
    for i in range(4):
        S.add(0, f"buffer_load_dwordx4 {vr(STG0+4*i,4)}, {aG}, {SWS}, s13 offen offset:{1024*i} sc1", chain="sh")
    for i in range(18):
        S.add(3, f"ds_read_b64_tr_b16 {vr(LOW0+2*i,2)}, {aYL} offset:{128*(17-i)}", tag=("low",), chain="sh")
    for i in range(4):
        S.add(3, (f"s_waitcnt vmcnt(0)\n" if i == 0 else "") + f"ds_write_b128 {aUw}, {vr(STG0+4*i,4)} offset:{USH+1024*i}",
              tag=("ush",), nb=first(cfg.land_at), chain="sh")
    st = dict(nt=0, prev=None)
    def new_acc():
        k = st["nt"]; st["nt"] += 1
        S.force(lambda it: it["tag"] is not None and it["tag"][0] == "red" and it["tag"][1] <= k - NACC + 1)
        return ACC0 + 4 * (k % NACC), k
    def mm(acc, yreg, m, firstm):
        return f"v_mfma_f32_16x16x32_bf16 {vr(acc,4)}, {vr(yreg,4)}, {vr(X0+4*m,4)}, {'0' if firstm else vr(acc,4)}"
    for T in range(30):
        acc, k = new_acc()
        for m in range(T // 2 + 1):
            S.mfma(mm(acc, Y0 + 2 * (31 - T + 2 * m), m, m == 0), {("x", m), ("y",)})
        add_reduction(S, acc, st["prev"], T, k & 1, k); st["prev"] = acc
        if T == 0: stamp_in_stream(S, 5)
    S.force(lambda it: it["chain"] in ("sh", "x"))
    a30, k30 = new_acc(); a31, k31 = new_acc()
    for m in range(16):
        S.mfma(mm(a31, Y0 + 4 * m, m, m == 0), {("x", m)})
        S.mfma(mm(a30, Y0 + 4 * m + 2, m, m == 0), set(), room=0)
        for i in (2 * m, 2 * m + 1) + ((32,) if m == 15 else ()):
            S.add(1, f"ds_read_b64_tr_b16 {vr(Y0+2*i,2)}, {aYH} offset:{128*(32-i)}", tag=("hi", i), chain="t")
        for hh in range(2):
            S.add(1, xread(m, hh, 1), tag=("xs", m), chain="t")
        for _ in range(2):
            it = S.pick()
            if it: S.q.remove(it); S.issue(it)
    add_reduction(S, a30, st["prev"], 30, k30 & 1, k30)
    add_reduction(S, a31, a30, 31, k31 & 1, k31)
    for h in range(1, 8):
        p.e(f"s_cmp_eq_u32 {sX}, {h}\ns_cbranch_scc1 L_tail{h}")
    base_hist, base = list(p.hist[:-14]), (copy.deepcopy(S.q), list(S.lds), list(S.when), S.done, S.n, dict(st))
    for h in range(8):
        if h:
            p.cut(); p.e(f"L_tail{h}:"); p.hist = list(base_hist)
            S.q, S.lds, S.when, S.done, S.n = copy.deepcopy(base[0]), list(base[1]), list(base[2]), base[3], base[4]
            st.update(base[5])
        topL, topH = 128 + 124 * h, 1984 - 124 * h
        runs = [[(topL - 64 * i, LOW0, i, "low", slot) for i, slot in (((2, 36),) if h == 0 else ()) + ((1, 32), (0, 33))],
                [(topH - 64 * i, Y0, i, "hi", slot) for i, slot in ((1, 34), (0, 35))]]
        for run in runs:
            prev = None
            for w, arr, i0, kind, slot in run:
                acc, k = new_acc()
                for m in range((w + 63) // 128 + 1):
                    i = i0 + 2 * m
                    tags = {("xs", m)} | ({("low",)} if kind == "low" else {("hi", i), ("hi", i + 1)})
                    S.mfma(mm(acc, arr + 2 * i, m, m == 0), tags)
                add_reduction(S, acc, prev, slot, k & 1, k); prev = acc
        S.q = [it for it in S.q if it["chain"] != "t"]
        S.drain()
        if cfg.stamps:
            stamp(p, "M", 6); stamp_flush(p, 7)
        p.e("s_endpgm")
    p.cut()
    p.e(f"""
L_slow1:
    s_mov_b32 s14, 0
L_slow1b:
    buffer_load_dword {vP}, {aF}, {SWS}, s38 offen sc1
    s_add_u32 s14, s14, 1
    s_waitcnt vmcnt(0)
    v_cmp_ne_u32 vcc, {sTAG}, {vP}
    s_cbranch_vccz L_back1
    s_cmp_lt_u32 s14, {SPIN}
    s_cbranch_scc1 L_slow1b
    s_branch L_back1
L_slow2:
    s_mov_b32 s14, 0
L_slow2b:
    ds_read_b32 {vP2}, v254
    s_add_u32 s14, s14, 1
    s_waitcnt lgkmcnt(0)
    v_cmp_eq_u32 vcc, 0, {vP2}
    s_cbranch_vccz L_back2
    s_cmp_lt_u32 s14, {SPIN*8}
    s_cbranch_scc1 L_slow2b
    s_branch L_back2
    """)
    p.cut()

def stamp_in_stream(S, idx):
    if cfg.stamps:
        S.issue(dict(text=f"{timer()} s[{80+2*idx}:{81+2*idx}]\ns_waitcnt lgkmcnt(0)", tag=None, after=None))

def kv_compute(p, KR, VR, SW, G, wait_k, wait_v):
    K, W, KS, VT = 80, 102, 110, 126
    p.e(f"s_waitcnt vmcnt({wait_k})\n.p2align 3")
    for j in range(4):
        for c in range(2):
            src = SW + 2 * c + (j >> 1)
            p.e(f"v_and_b32 v{W+2*j+c}, 0xffff0000, v{src}" if j & 1 else f"v_lshlrev_b32_e64 v{W+2*j+c}, 16, v{src}")
    for i in range(11):
        p.e(f"v_lshlrev_b32_e64 v{K+2*i}, 16, v{KR+i}\nv_and_b32 v{K+2*i+1}, 0xffff0000, v{KR+i}")
    for j in (3, 2, 1, 0):
        for t in range(8):
            k = vr(K + 2 * (t + 3 - j), 2)
            if j == 3: p.e(f"v_pk_mul_f32 {vr(KS+2*t,2)}, {k}, {vr(W+2*j,2)}")
            else: p.e(f"v_pk_fma_f32 {vr(KS+2*t,2)}, {k}, {vr(W+2*j,2)}, {vr(KS+2*t,2)}")
    p.e(f"s_waitcnt vmcnt({wait_v})\n.p2align 3")
    for t in range(8):
        p.e(f"v_lshlrev_b32_e64 v{K+2*t}, 16, v{VR+t}\nv_and_b32 v{K+2*t+1}, 0xffff0000, v{VR+t}")
    for t in range(8):
        p.e(f"v_pk_mul_f32 {vr(KS+2*t,2)}, {vr(KS+2*t,2)}, {vr(K+2*t,2)}")
    for c in range(2):
        for i in range(4):
            p.e(f"v_cvt_pk_bf16_f32 v{G+4*c+i}, v{KS+4*i+c}, v{KS+4*i+2+c}")

def data_wave(p):
    vIn, vSw, vSr, vOut, vH, vH2 = "v200", "v201", "v202", "v203", "v204", "v205"
    GQ, GW, KR, VR, SW, KR2, VR2, SW2, G, RB = 2, 14, 26, 37, 46, 50, 61, 70, 128, 136
    vZd, vT = "v206", "v209"
    p.e("L_data:")
    stamp(p, "D", 0)
    p.e(f"""
    s_load_dwordx2 s[12:13], s[0:1], 8
    s_load_dwordx2 s[16:17], s[0:1], 16
    s_load_dwordx2 s[32:33], s[0:1], 24
    s_load_dwordx2 s[36:37], s[0:1], 104
    s_load_dwordx2 s[24:25], s[0:1], 112
    s_setprio 3
    s_mov_b32 s14, {NB}
    s_mov_b32 s15, 0x20000
    s_mov_b32 s18, {NB}
    s_mov_b32 s19, 0x20000
    s_mov_b32 s26, {NB}
    s_mov_b32 s27, 0x20000
    s_mov_b32 s38, {ROW}
    s_mov_b32 s39, 0x20000
    s_mul_i32 s56, {sW}, {STG}
    s_add_u32 s56, s56, {L_STG}
    """)
    lane_transpose_addrs(p, vIn, vSw, vSr, vOut, "s56")
    p.e(f"""
    s_lshl_b32 s57, {sX}, 5
    s_add_u32 s57, s57, {sR}
    s_lshl_b32 s57, s57, 2
    s_add_u32 s57, s57, {sW}
    s_lshl_b32 s57, s57, 1
    s_mul_i32 s58, s57, {ROW}
    v_and_b32 v210, 31, v1
    v_lshrrev_b32 v211, 5, v1
    v_cmp_gt_u32 vcc, 24, v210
    v_lshlrev_b32 v210, 4, v210
    v_mov_b32 v212, 0x40000000
    v_cndmask_b32 v210, v212, v210, vcc
    v_mul_u32_u24 v212, {ROW}, v211
    v_add_u32 v212, v212, v210
    s_lshl_b32 s59, {sX}, 2
    s_add_u32 s60, s59, {sW}
    s_mul_i32 s61, {sR}, {64*ROW}
    s_lshl_b32 s62, s60, 5
    s_add_u32 s61, s61, s62
    s_add_u32 s62, s61, {4*ROW}
    s_sub_u32 s63, s61, {3*ROW}
    v_add_u32 {vH}, s63, {vIn}
    v_and_b32 v213, 7, v1
    s_lshl_b32 s63, s60, 7
    v_lshl_add_u32 v214, v213, 4, s63
    s_lshr_b32 s64, {sR}, 3
    s_add_u32 s64, s64, s59
    s_and_b32 s65, {sR}, 3
    s_add_u32 s66, s65, 32
    s_mul_i32 s67, s64, {64*ROW}
    s_lshl_b32 s68, s66, 5
    s_add_u32 s67, s67, s68
    s_add_u32 s68, s67, {4*ROW}
    s_sub_u32 s63, s67, {3*ROW}
    v_add_u32 {vH2}, s63, {vIn}
    s_lshl_b32 s63, s66, 7
    v_lshl_add_u32 v215, v213, 4, s63
    s_bfe_u32 s69, {sR}, 0x10002
    s_cmp_eq_u32 {sW}, 0
    s_cselect_b32 s70, s69, 2
    s_waitcnt lgkmcnt(0)
    """)
    for i in range(3):
        p.e(f"buffer_load_dwordx4 {vr(GQ+4*i,4)}, v212, {SQ}, s58 offen offset:{384*i}")
    p.e(f"s_load_dword {sTAG}, s[20:21], 0")
    for i in range(3):
        p.e(f"buffer_load_dwordx4 {vr(GW+4*i,4)}, v210, {SGW}, 0 offen offset:{384*i}")
    p.e(f"global_load_dwordx4 {vr(SW,4)}, v214, s[32:33]")
    load_halo(p, KR, vH, SK)
    load_rows(p, KR + 3, vIn, SK, "s61", "s62")
    load_rows(p, VR, vIn, SV, "s61", "s62")
    p.e(f"""
    v_mov_b32 v132, -1
    v_mov_b32 v133, -1
    v_mov_b32 v134, -1
    v_mov_b32 v135, -1
    s_lshl_b32 s54, {sW}, 10
    s_add_u32 s54, s54, {L_Y}
    v_lshl_add_u32 v216, v1, 4, s54
    """)
    for i in range(9):
        p.e(f"ds_write_b128 v216, v[132:135] offset:{4096*i}")
    p.e(f"""
    v_lshlrev_b32 v217, 4, v1
    v_add_u32 v217, {L_Y + 36*1024}, v217
    ds_write_b128 v217, v[132:135]
    v_mov_b32 {vZd}, 0
    s_mul_i32 s71, s60, {16*UST}
    s_lshl_b32 s72, {sR}, 7
    s_add_u32 s71, s71, s72
    s_add_u32 s71, s71, {WS_UT}
    s_add_u32 s72, s71, {8*UST}
    s_mul_i32 s73, s69, 36
    s_add_u32 s73, s73, s66
    s_mul_i32 s73, s73, {16*UST}
    s_lshl_b32 s74, s64, 7
    s_add_u32 s73, s73, s74
    s_add_u32 s73, s73, {WS_UT}
    s_add_u32 s74, s73, {8*UST}
    """)
    flag_index(p, "s75", 0, sX, sW)
    p.e(f"s_mul_i32 s54, {sR}, {cfg.fs}\ns_add_u32 s75, s75, s54")
    flag_index(p, "s76", "s69", 8, "s65")
    p.e(f"""
    s_mul_i32 s54, s64, {cfg.fs}
    s_add_u32 s76, s76, s54
    s_lshl_b32 s77, s57, 3
    s_add_u32 s77, s77, {WS_G}
    v_lshlrev_b32 v211, 3, v211
    s_mov_b32 s34, 0x05040100
    s_mov_b32 s35, 0x07060302
    s_waitcnt lgkmcnt(0)
    s_barrier
    """)
    make_tag(p)
    p.e(f"v_mov_b32 {vT}, {sTAG}\ns_waitcnt vmcnt(20)")
    stamp(p, "D", 1)
    for i in range(12):
        p.e(f"v_dot2_f32_bf16 v208, v{GQ+i}, v{GW+i}, {'0' if i == 0 else 'v208'}")
    for sh in (1, 2, 4, 8):
        p.e(f"v_add_f32_dpp v208, v208, v208 row_shr:{sh} row_mask:0xf bank_mask:0xf bound_ctrl:0")
    p.e(f"""
    v_add_f32_dpp v208, v208, v208 row_bcast:15 row_mask:0xa bank_mask:0xf
    v_mul_f32 v208, {f32(-math.log2(math.e))}, v208
    v_exp_f32 v208, v208
    v_add_f32 v208, 1.0, v208
    v_rcp_f32 v208, v208
    s_mov_b32 exec_lo, 0x80000000
    s_mov_b32 exec_hi, 0x80000000
    buffer_store_dwordx2 v[208:209], v211, {SWS}, s77 offen sc1
    s_mov_b64 exec, -1
    s_cmp_eq_u32 s70, 2
    s_cbranch_scc1 L_dplain
    s_cmp_eq_u32 s70, 1
    s_cbranch_scc1 L_dx
    """)
    hist = list(p.hist)
    p.e(f"global_load_dwordx4 {vr(SW2,4)}, v215, s[32:33]")
    load_halo(p, KR2, vH2, SK)
    load_rows(p, KR2 + 3, vIn, SK, "s67", "s68")
    load_rows(p, VR2, vIn, SV, "s67", "s68")
    kv_compute(p, KR, VR, SW, G, 8 + 21, 21)
    stamp(p, "D", 2)
    publish(p, G, RB, vSw, vSr, vOut, "s71", "s72", "sc1")
    kv_compute(p, KR2, VR2, SW2, G, 10, 2)
    p.e("s_branch L_dextra")
    p.cut(); p.e("L_dx:"); p.hist = list(hist)
    load_rows(p, VR2, vIn, SQ, "s67", "s68")
    kv_compute(p, KR, VR, SW, G, 8 + 9, 9)
    stamp(p, "D", 2)
    publish(p, G, RB, vSw, vSr, vOut, "s71", "s72", "sc1")
    p.e("s_waitcnt vmcnt(2)")
    x_pack(p, VR2, G, "s34", "s35")
    p.e("L_dextra:")
    publish(p, G, RB + 8, vSw, vSr, vOut, "s73", "s74", "sc1")
    p.e("s_waitcnt vmcnt(2)")
    flag_store(p, "s75", vZd, vT, "sc1")
    p.e("s_waitcnt vmcnt(1)")
    flag_store(p, "s76", vZd, vT, "sc1")
    p.e("s_branch L_dpub")
    p.cut(); p.e("L_dplain:"); p.hist = list(hist)
    kv_compute(p, KR, VR, SW, G, 8 + 1, 1)
    stamp(p, "D", 2)
    publish(p, G, RB, vSw, vSr, vOut, "s71", "s72", "sc1")
    p.e("s_waitcnt vmcnt(0)")
    flag_store(p, "s75", vZd, vT, "sc1")
    p.e("L_dpub:")
    stamp(p, "D", 3)
    GG, QQ, YY, OO = 2, 24, 44, 48
    p.e(f"""
    s_setprio 0
    s_mul_i32 s54, {sX}, 124
    s_add_u32 s55, s54, 64
    s_sub_u32 s54, 1920, s54
    s_cmp_ge_u32 {sW}, 2
    s_cselect_b32 s57, s54, s55
    s_and_b32 s54, {sW}, 1
    s_lshl_b32 s54, s54, 6
    s_add_u32 s57, s57, s54              ; first row of this wave's shared tile
    s_lshl_b32 s58, s57, 3
    s_add_u32 s58, s58, {WS_G}
    s_lshl_b32 s59, {sW}, 9
    s_add_u32 s59, s59, {WS_G}
    s_add_u32 s60, s59, 4096
    s_add_u32 s61, s59, 8192
    s_add_u32 s62, s59, 12288
    s_mov_b32 s63, {WS_G}
    v_lshlrev_b32 v210, 3, v1
    s_mov_b32 s64, 0
L_gpoll:
    """)
    for i in range(8):
        p.e(f"buffer_load_dwordx2 {vr(GG+2*i,2)}, v210, {SWS}, s{59+(i>>1)} offen offset:{2048*(i&1)} sc1")
    p.e(f"buffer_load_dwordx2 {vr(GG+16,2)}, v210, {SWS}, s58 offen sc1\nbuffer_load_dwordx2 {vr(GG+18,2)}, v210, {SWS}, s63 offen sc1")
    p.e("s_add_u32 s64, s64, 1\ns_waitcnt vmcnt(0)")
    for i in range(10):
        p.e(f"v_xor_b32 v{GG+2*i+1}, {sTAG}, v{GG+2*i+1}")
    p.e(f"""
    v_or3_b32 v211, v{GG+1}, v{GG+3}, v{GG+5}
    v_or3_b32 v211, v211, v{GG+7}, v{GG+9}
    v_or3_b32 v211, v211, v{GG+11}, v{GG+13}
    v_or3_b32 v211, v211, v{GG+15}, v{GG+17}
    v_or_b32 v211, v211, v{GG+19}
    v_cmp_ne_u32 vcc, 0, v211
    s_cbranch_vccz L_gok
    s_cmp_lt_u32 s64, {SPIN}
    s_cbranch_scc1 L_gpoll
L_gok:
    """)
    stamp(p, "D", 4)
    p.e(f"""
    s_lshl_b32 s54, s2, 2
    s_add_u32 s54, s54, {sW}
    s_cmp_lg_u32 s54, 1
    s_cbranch_scc1 L_noepoch
    v_lshlrev_b32 v211, 6, v1
    s_mov_b32 s64, 0
    s_mov_b32 s59, {WS_G + 4}
    s_mov_b32 s60, {WS_G + 4 + 4096}
    s_mov_b32 s61, {WS_G + 4 + 8192}
    s_mov_b32 s62, {WS_G + 4 + 12288}
L_epoll:
    """)
    for i in range(4):
        p.e(f"buffer_load_dword v{212+i}, v211, {SWS}, s{59+i} offen sc1")
    p.e("s_add_u32 s64, s64, 1\ns_waitcnt vmcnt(0)")
    for i in range(4):
        p.e(f"v_xor_b32 v{212+i}, {sTAG}, v{212+i}")
    p.e(f"""
    v_or3_b32 v212, v212, v213, v214
    v_or_b32 v212, v212, v215
    v_cmp_ne_u32 vcc, 0, v212
    s_cbranch_vccz L_eok
    s_cmp_lt_u32 s64, {SPIN}
    s_cbranch_scc1 L_epoll
L_eok:
    """)
    flag_store(p, "0", vZd, vT, "sc1")
    p.e("L_noepoch:")
    for i in range(10):
        p.e(f"v_sub_f32 v{GG+2*i+1}, 1.0, v{GG+2*i}")
    for i in range(20):
        p.e(f"v_mov_b32 v{QQ+i}, 0")
    p.e(f"""
    s_lshl_b32 s54, {sW}, 7
    s_add_u32 s54, s54, {L_SCR + 2*SCR + 32}
    v_lshl_add_u32 v218, v1, 1, s54
    s_lshl_b32 s54, s57, 1
    s_add_u32 s54, s54, {L_SCR + 2*SCR + 32 + USH}
    v_lshl_add_u32 v219, v1, 1, s54      ; x of the shared pair
    v_lshlrev_b32 v220, 1, v1
    v_add_u32 v220, {L_SCR + 2*SCR + 32 + USH}, v220
    v_mul_u32_u24 v221, {ROW}, v1
    s_lshl_b32 s54, {sR}, 2
    v_add_u32 v221, s54, v221
    s_lshl_b32 s54, {sX}, 2
    s_add_u32 s54, s54, {sW}
    s_and_b32 s55, {sW}, 1
    s_cmp_eq_u32 s55, 0
    s_cselect_b32 s55, 4, 0
    s_cmp_eq_u32 s54, 0
    s_cselect_b32 s55, 0, s55            ; first valid lane of the shared tile
    s_cmp_eq_u32 s54, 29
    s_cselect_b32 s65, 60, 64
    v_cmp_le_u32 vcc, s55, v1
    v_cmp_gt_u32 s[66:67], s65, v1
    s_and_b64 vcc, vcc, s[66:67]
    v_mov_b32 v222, 0x40000000
    v_cndmask_b32 v222, v222, v221, vcc
    s_mul_i32 s59, {sW}, {64*ROW}
    s_lshl_b32 s60, {sX}, 7
    s_add_u32 s59, s59, s60
    s_mul_i32 s60, s57, {ROW}
    s_add_u32 s60, s60, 1024
    s_mov_b32 s61, 1024
    """)
    def tile(name, yaddr, yoff, i, qaddr, qoff, oaddr, soff, post=None, first=False):
        q, g, o = QQ + 2 * i, GG + 2 * i, OO + 2 * (i & 1)
        p.e(f"s_mov_b32 s64, 0\nL_t{name}:\nds_read_b128 {vr(YY,4)}, {yaddr} offset:{yoff}")
        if qaddr:
            p.e(f"ds_read_u16_d16_hi v{q}, {qaddr} offset:{qoff}\nds_read_u16_d16_hi v{q+1}, {qaddr} offset:{qoff+SCR}")
        p.e(f"""
        s_waitcnt lgkmcnt(0)
        v_max3_u32 v211, v{YY}, v{YY+1}, v{YY+2}
        v_max_u32 v211, v211, v{YY+3}
        v_cmp_eq_u32 vcc, -1, v211
        s_cbranch_vccz L_u{name}
        s_sleep 1
        s_add_u32 s64, s64, 1
        s_cmp_lt_u32 s64, {SPIN*4}
        s_cbranch_scc1 L_t{name}
L_u{name}:
        """)
        if first: stamp(p, "D", 5)
        p.e(f"""
        v_pk_mul_f32 {vr(q,2)}, {vr(q,2)}, {vr(g,2)} op_sel_hi:[1,0]
        v_pk_mul_f32 {vr(o,2)}, {vr(YY+2,2)}, {vr(g,2)} op_sel:[0,1]
        v_pk_fma_f32 {vr(o,2)}, {vr(q,2)}, {vr(YY,2)}, {vr(o,2)}
        v_cvt_pk_bf16_f32 v{o}, v{o}, v{o+1}
        s_waitcnt vmcnt({cfg.st_inflight})
        buffer_store_dword v{o}, {oaddr}, {SOUT}, {soff} offen
        """)
        if post: post()
    def rest_q():
        for i in range(1, 8):
            p.e(f"ds_read_u16_d16_hi v{QQ+2*i}, v218 offset:{512*i}\nds_read_u16_d16_hi v{QQ+2*i+1}, v218 offset:{512*i+SCR}")
    for i in range(8):
        tile(f"o{i}", "v216", 4096 * i, i, "v218" if i == 0 else None, 0, "v221", "s59", post=rest_q if i == 0 else None, first=i == 0)
        if i < 7: p.e(f"s_add_u32 s59, s59, {256*ROW}")
    p.e("s_cmp_lg_u32 s54, 2\ns_cbranch_scc1 L_nol0")
    tile("z", "v217", 0, 9, "v220", 0, "v221", "s61")
    p.e("L_nol0:")
    tile("s", "v216", 4096 * 8, 8, "v219", 0, "v222", "s60")
    if cfg.stamps:
        p.e("s_waitcnt vmcnt(0)")
        stamp(p, "D", 6); stamp_flush(p, 7, "D")

def build():
    p = Prog()
    prologue(p)
    hist = list(p.hist)
    matrix_wave(p)
    p.hist = hist
    data_wave(p)
    p.e("L_end:\ns_endpgm")
    head = "".join(l for l in open("cdna_kernels/" + KNAME[:-7] + ".s.ref") if l.startswith(";") and "@launch" not in l and "Override" not in l and "grid=ceil" not in l)
    out = head + f"; @launch grid=(256,1,1) block=(512,1,1) lds={LDS_BYTES}\n"
    out += f""".amdgcn_target "amdgcn-amd-amdhsa--gfx950"
.text
.globl {KNAME}
.p2align 8
.type {KNAME},@function
{KNAME}:
"""
    out += p.text()
    out += f""".section .rodata,"a"
.p2align 6
.amdhsa_kernel {KNAME}
  .amdhsa_next_free_vgpr 256
  .amdhsa_next_free_sgpr 96
  .amdhsa_accum_offset 256
  .amdhsa_group_segment_fixed_size 0
  .amdhsa_kernarg_size 136
  .amdhsa_user_sgpr_count 2
  .amdhsa_user_sgpr_kernarg_segment_ptr 1
  .amdhsa_system_sgpr_workgroup_id_x 1
.end_amdhsa_kernel
"""
    return out, p

if __name__ == "__main__":
    dst = sys.argv[1]
    for kv in sys.argv[2:]:
        k, v = kv.split("=")
        old = getattr(cfg, k)
        setattr(cfg, k, (v == "1") if isinstance(old, bool) else type(old)(v))
    text, p = build()
    open(dst, "w").write(text)
    print("wrote", dst, "instructions", sum(1 for i in p.ins if i.states), "nop states", p.nops, "lds", LDS_BYTES)
```
